```python
import torch

def _softmax(x, axis=-1):
    return torch.softmax(x, dim=axis)
def _gelu(x):
    return torch.nn.functional.gelu(x, approximate="tanh")
def _silu(x):
    return torch.nn.functional.silu(x)
def _sigmoid(x):
    return torch.sigmoid(x)
def _layernorm(x, axis=-1, eps=1e-5):
    m = x.mean(dim=axis, keepdim=True)
    v = x.var(dim=axis, keepdim=True, unbiased=False)
    return (x - m) / torch.sqrt(v + eps)
def _scatter_add(tgt, idx, src, axis=0):
    return tgt.clone().index_add_(axis, idx, src)
def _segment_sum(src, seg, n):
    out = torch.zeros((n,) + src.shape[1:], dtype=src.dtype)
    return out.index_add_(0, seg, src)
def _pad(x, pw):
    flat = tuple(v for pair in reversed(pw) for v in pair)
    return torch.nn.functional.pad(x, flat)

kernel_name = 'standalone__sparse_matmul_formats_ell__sparse_mat'

def setup_inputs():

    _w = (lambda a: (lambda t: t.to(torch.bfloat16) if t.is_floating_point() else t)(torch.as_tensor(a)))
    M = N = 16384
    D = 256
    K = max(1, int(0.01 * N))
    col_idx = (lambda lo, hi, *s: torch.randint(lo, hi, s))(0, N, M, K)
    vals = (lambda *s: torch.randn(*s, dtype=torch.bfloat16) * 0.05)(M, K)
    lengths = (lambda lo, hi, *s: torch.randint(lo, hi, s))(1, K + 1, M)
    mask = (torch.arange(K)[None, :] < lengths[:, None]).to(vals.dtype)
    vals = vals * mask
    b = (lambda *s: torch.randn(*s, dtype=torch.bfloat16) * 0.05)(N, D)
    return {
        "vals": _w(vals),
        "col_idx": _w(col_idx),
        "b": _w(b),
    }

def reference(vals, col_idx, b):
    gathered = b[col_idx]
    return torch.einsum("mk,mkd->md", vals, gathered)
```

```python
import sys
NAME = "standalone__sparse_matmul_formats_ell__sparse_mat"
D = 7
NB = 8
WAVES = 4
ROWS_PER_WG = WAVES*2
NWG = 16384*2//ROWS_PER_WG
o = []
def e(s): o.append(s)
HDR = open('cdna_kernels/%s.s.ref' % NAME).read().split('\n')
for l in HDR[:8]:
    if l.startswith('; Override') : break
    e(l)
e("; @launch grid=(%d,1,1) block=(%d,1,1) lds=0" % (NWG, WAVES*64))
e('.amdgcn_target "amdgcn-amd-amdhsa--gfx950"')
e('.text')
e('.globl %s_kernel' % NAME)
e('.p2align 8')
e('.type %s_kernel,@function' % NAME)
e('%s_kernel:' % NAME)
vBUF = 0
vLane=1; vL2=2; vL4=3; vL2b=4; vL4b=5; vPermA=6; vLaneOff=7
vM=8
vA=12
vAcc=16
vC=20
vV=26
vVP=1
vVP=2
vAddr=3
vBUF=32
sVal=4; sCol=6; sB=8; sOut=10
srdV=12; srdC=16; srdB=20; srdO=24
sRow=28; sOffV=29; sOffC=30; sSel=31; sN=32; sNY=33; sT=34; sSlice=35; sPhase=36
sM=40
e("  s_cmp_ge_u32 s2, %d" % NWG)
e("  s_cbranch_scc1 L_end")
e("  s_load_dwordx4 s[4:7], s[0:1], 0")
e("  s_load_dwordx4 s[8:11], s[0:1], 16")
e("  v_lshrrev_b32 v%d, 6, v0" % vL2)
e("  v_and_b32 v%d, 63, v0" % vLane)
e("  v_readfirstlane_b32 s%d, v%d" % (sT, vL2))
e("  s_and_b32 s%d, s2, 1" % sSlice)
e("  s_bfe_u32 s%d, s2, 0x20001" % sRow)
e("  s_lshl_b32 s%d, s%d, 12" % (sRow, sRow))
e("  s_and_b32 s3, s2, 0xfffffff8")
e("  s_add_u32 s%d, s%d, s3" % (sRow, sRow))
e("  s_lshl_b32 s%d, s%d, 1" % (sT, sT))
e("  s_add_u32 s%d, s%d, s%d" % (sRow, sRow, sT))
e("  s_mul_i32 s%d, s%d, 326" % (sOffV, sRow))
e("  s_mul_i32 s%d, s%d, 652" % (sOffC, sRow))
e("  v_lshlrev_b32 v%d, 1, v%d" % (vL2, vLane))
e("  v_lshlrev_b32 v%d, 2, v%d" % (vL4, vLane))
e("  v_cmp_gt_u32 vcc, 35, v%d" % vLane)
e("  v_bfrev_b32 v%d, 2" % vL4b)
e("  s_mov_b32 s%d, 0x05040100" % sSel)
e("  v_cndmask_b32 v%d, v%d, v%d, vcc" % (vL2b, vL4b, vL2))
e("  v_cndmask_b32 v%d, v%d, v%d, vcc" % (vL4b, vL4b, vL4))
e("  s_mov_b32 s%d, %d" % (srdV+2, 16384*326))
e("  s_mov_b32 s%d, 0x20000" % (srdV+3))
e("  s_mov_b32 s%d, %d" % (srdC+2, 16384*652))
e("  s_mov_b32 s%d, 0x20000" % (srdC+3))
e("  s_mov_b32 s%d, %d" % (srdB+2, 16384*512))
e("  s_mov_b32 s%d, 0x20000" % (srdB+3))
e("  s_mov_b32 s%d, %d" % (srdO+2, 16384*512))
e("  s_mov_b32 s%d, 0x20000" % (srdO+3))
e("  s_waitcnt lgkmcnt(0)")
for srd, p in ((srdV,sVal),(srdC,sCol),(srdB,sB),(srdO,sOut)):
    e("  s_mov_b32 s%d, s%d" % (srd, p))
    e("  s_and_b32 s%d, s%d, 0xffff" % (srd+1, p+1))
for r in range(2):
    for b in range(3):
        e("  buffer_load_ushort v%d, v%d, s[%d:%d], s%d offen offset:%d" % (vV+3*r+b, vL2b if b==2 else vL2, srdV, srdV+3, sOffV, 326*r+128*b))
        e("  buffer_load_dword v%d, v%d, s[%d:%d], s%d offen offset:%d" % (vC+3*r+b, vL4b if b==2 else vL4, srdC, srdC+3, sOffC, 652*r+256*b))
e("  v_and_b32 v%d, 15, v%d" % (vLaneOff, vLane))
e("  v_lshrrev_b32 v%d, 4, v%d" % (vPermA, vLane))
e("  v_lshlrev_b32 v%d, 2, v%d" % (vPermA, vPermA))
e("  v_lshl_add_u32 v%d, v%d, 4, v%d" % (vPermA, vLaneOff, vPermA))
e("  v_and_b32 v%d, 1, v%d" % (vA, vLane))
e("  v_lshlrev_b32 v%d, 4, v%d" % (vA, vA))
e("  v_mov_b32 v%d, 0xffff" % (vA+1))
e("  v_lshlrev_b32 v%d, v%d, v%d" % (vA, vA, vA+1))
e("  v_lshrrev_b32 v%d, 1, v%d" % (vA+1, vLaneOff))
for r in range(4):
    e("  v_cmp_eq_u32 vcc, %d, v%d" % (r, vA+1))
    e("  v_mov_b32 v%d, 0" % (vAcc+r))
    e("  s_nop 0")
    e("  v_cndmask_b32 v%d, 0, v%d, vcc" % (vM+r, vA))
e("  s_lshl_b32 s%d, s%d, 8" % (sSlice, sSlice))
e("  v_lshlrev_b32 v%d, 4, v%d" % (vLaneOff, vLaneOff))
e("  v_add_u32 v%d, s%d, v%d" % (vLaneOff, sSlice, vLaneOff))
for k in range(6):
    e("  s_waitcnt vmcnt(%d)" % (10-2*k))
    e("  v_and_b32 v%d, 0x7fff, v%d" % (vA, vV+k))
    e("  v_cmp_ne_u32 s[%d:%d], 0, v%d" % (sM+2*k, sM+2*k+1, vA))
    e("  s_nop 1")
    e("  v_cndmask_b32 v%d, -1, v%d, s[%d:%d]" % (vC+k, vC+k, sM+2*k, sM+2*k+1))
    e("  v_perm_b32 v%d, v%d, v%d, s%d" % (vC+k, vV+k, vC+k, sSel))
    e("  ds_bpermute_b32 v%d, v%d, v%d" % (vC+k, vPermA, vC+k))
e("  s_mov_b32 s%d, 0x03020302" % sSel)
for r in range(2):
    sn = sN + r
    e("  s_mov_b32 s%d, 0" % sn)
    for b in range(3):
        m = sM + 2*(3*r+b)
        e("  s_flbit_i32_b64 s%d, s[%d:%d]" % (sT, m, m+1))
        e("  s_sub_u32 s%d, %d, s%d" % (sT, 64*(b+1)+3, sT))
        e("  s_cmp_lg_u64 s[%d:%d], 0" % (m, m+1))
        e("  s_cselect_b32 s%d, s%d, s%d" % (sn, sT, sn))
    e("  s_lshr_b32 s%d, s%d, 2" % (sn, sn))
for k in range(6):
    e("  s_waitcnt lgkmcnt(%d)" % (5-k))
    e("  v_perm_b32 v%d, v%d, v%d, s%d" % (vV+k, vC+k, vC+k, sSel))
    e("  v_lshlrev_b32_sdwa v%d, 9, v%d dst_sel:DWORD dst_unused:UNUSED_PAD src0_sel:DWORD src1_sel:WORD_0" % (vC+k, vC+k))
e("  s_mov_b32 s%d, 0" % sPhase)
e("  s_mov_b64 vcc, 0")
def ands(u):
    src = vV if u >= 0 else vVP
    for r in range(4):
        e("  v_and_b32_dpp v%d, v%d, v%d row_newbcast:%d row_mask:0xf bank_mask:0xf" % (vA+r, src, vM+r, u & 15))
def mfma(u):
    b = vBUF + 4*(u % NB)
    e("  v_mfma_f32_16x16x32_bf16 v[%d:%d], v[%d:%d], v[%d:%d], v[%d:%d]" % (vAcc, vAcc+3, vA, vA+3, b, b+3, vAcc, vAcc+3))
e("L_block:")
for t in range(16):
    e("  s_cmp_le_u32 s%d, %d" % (sN, t))
    e("  s_cbranch_scc1 L_drain%d" % t)
    ands(t-D)
    e("  v_add_u32_dpp v%d, v%d, v%d row_newbcast:%d row_mask:0xf bank_mask:0xf" % (vAddr, vC, vLaneOff, t))
    b = vBUF + 4*(t % NB)
    e("  buffer_load_dwordx4 v[%d:%d], v%d, s[%d:%d], 0 offen" % (b, b+3, vAddr, srdB, srdB+3))
    if t < D:
        e("  s_cbranch_vccz L_skip%d" % t)
    e("  s_waitcnt vmcnt(%d)" % D)
    mfma(t-D)
    if t < D:
        e("L_skip%d:" % t)
e("  s_sub_u32 s%d, s%d, 16" % (sN, sN))
e("  v_mov_b32 v%d, v%d" % (vVP, vV))
e("  v_mov_b32 v%d, v%d" % (vC, vC+1))
e("  v_mov_b32 v%d, v%d" % (vV, vV+1))
e("  v_mov_b32 v%d, v%d" % (vC+1, vC+2))
e("  v_mov_b32 v%d, v%d" % (vV+1, vV+2))
e("  s_mov_b64 vcc, -1")
e("  s_branch L_block")
for t in range(D):
    e("L_drain%d:" % t)
    e("  s_waitcnt vmcnt(0)")
    e("  s_cbranch_vccz L_dc0")
    e("  s_branch L_dc%s" % str(t-D).replace('-','m'))
for t in range(D, 16):
    e("L_drain%d:" % t)
    e("  s_waitcnt vmcnt(0)")
    e("  s_branch L_dc%d" % (t-D))
for u in range(-D, 15):
    e("L_dc%s:" % str(u).replace('-','m'))
    if u >= 0:
        e("  s_cmp_le_u32 s%d, %d" % (sN, u))
        e("  s_cbranch_scc1 L_rowend")
    ands(u)
    e("  s_nop 1")
    mfma(u)
e("L_rowend:")
e("  s_cmp_lg_u32 s%d, 0" % sPhase)
e("  s_cbranch_scc1 L_epi")
e("  s_mov_b32 s%d, 1" % sPhase)
e("  s_mov_b32 s%d, s%d" % (sN, sNY))
for b in range(3):
    e("  v_mov_b32 v%d, v%d" % (vC+b, vC+3+b))
    e("  v_mov_b32 v%d, v%d" % (vV+b, vV+3+b))
for r in range(4):
    e("  v_mov_b32_dpp v%d, v%d row_ror:8 row_mask:0xf bank_mask:0xf" % (vM+r, vM+r))
e("  s_mov_b64 vcc, 0")
e("  s_branch L_block")
e("L_epi:")
e("  v_lshrrev_b32 v%d, 5, v%d" % (vA, vLane))
e("  v_lshlrev_b32 v%d, 9, v%d" % (vA, vA))
e("  v_lshrrev_b32 v%d, 1, v%d" % (vA+1, vLane))
e("  v_and_b32 v%d, 8, v%d" % (vA+1, vA+1))
e("  v_add3_u32 v%d, v%d, v%d, v%d" % (vA, vA, vA+1, vLaneOff))
e("  s_lshl_b32 s%d, s%d, 9" % (sT, sRow))
e("  s_nop 4")
e("  v_cvt_pk_bf16_f32 v%d, v%d, v%d" % (vAcc, vAcc, vAcc+1))
e("  v_cvt_pk_bf16_f32 v%d, v%d, v%d" % (vAcc+1, vAcc+2, vAcc+3))
e("  buffer_store_dwordx2 v[%d:%d], v%d, s[%d:%d], s%d offen" % (vAcc, vAcc+1, vA, srdO, srdO+3, sT))
e("L_end:")
e("  s_endpgm")
e('.section .rodata,"a"')
e('.p2align 6')
e('.amdhsa_kernel %s_kernel' % NAME)
e('  .amdhsa_next_free_vgpr 64')
e('  .amdhsa_next_free_sgpr 56')
e('  .amdhsa_accum_offset 64')
e('  .amdhsa_group_segment_fixed_size 0')
e('  .amdhsa_kernarg_size 48')
e('  .amdhsa_user_sgpr_count 2')
e('  .amdhsa_user_sgpr_kernarg_segment_ptr 1')
e('  .amdhsa_system_sgpr_workgroup_id_x 1')
e('.end_amdhsa_kernel')
out = sys.argv[1] if len(sys.argv) > 1 else 'cdna_kernels/%s.s' % NAME
open(out, 'w').write('\n'.join(o) + '\n')
```

```python
import sys, os
NAME = "standalone__sparse_matmul_formats_ell__sparse_mat"
WAVES = int(os.environ.get("WAVES","1"))
NB    = int(os.environ.get("NB","8"))
PREF  = int(os.environ.get("PREF","0"))
LDSW  = int(os.environ.get("LDSW","7168"))
DIAG  = int(os.environ.get("DIAG","0"))
OOBZ  = int(os.environ.get("OOBZ","1"))
NVG   = int(os.environ.get("NVG","0"))
R = 4
NBATCH = 16384//2//R
NWG = 8*NBATCH//WAVES
RAWV = 2608
LIST = 4096
o = []
def e(s): o.append(s)
HDR = open('cdna_kernels/%s.s.ref' % NAME).read().split('\n')
for l in HDR[:8]:
    if l.startswith('; Override') : break
    e(l)
e("; @launch grid=(%d,1,1) block=(%d,1,1) lds=%d" % (NWG, WAVES*64, WAVES*LDSW))
e('.amdgcn_target "amdgcn-amd-amdhsa--gfx950"')
e('.text')
e('.globl %s_kernel' % NAME)
e('.p2align 8')
e('.type %s_kernel,@function' % NAME)
e('%s_kernel:' % NAME)
NG = NB//4
vLane=1; vT0=2; vT1=3; vLaneOff=4; vAddr=5; vW=6; vAB=7; vRd=8; vOut=9
vM=12; vA=16; vAcc=20
vV=24
vBUF=32
vRawV=vBUF; vRawC=vBUF+12
NV = max(vBUF+4*NB, vBUF+24)
if PREF: vPF = NV; NV += 4
srdV=12; srdC=16; srdB=20; srdO=24
sRow=28; sOffV=29; sOffC=30; sSel=31; sI=32; sRem=33; sT=34; sQ=35; sPack=36; sBase=37; sLds=38; sN=39
sM=40
sTail=46
e("  s_cmp_ge_u32 s2, %d" % NWG)
e("  s_cbranch_scc1 L_end")
if DIAG:
    e("  s_memrealtime s[56:57]")
    e("  s_load_dwordx2 s[54:55], s[0:1], 40")
e("  s_load_dwordx4 s[4:7], s[0:1], 0")
e("  s_load_dwordx4 s[8:11], s[0:1], 16")
if WAVES > 1:
    e("  v_lshrrev_b32 v%d, 6, v0" % vT0)
    e("  v_and_b32 v%d, 63, v0" % vLane)
    e("  v_readfirstlane_b32 s%d, v%d" % (sT, vT0))
    e("  s_lshr_b32 s3, s2, 3")
    e("  s_mul_i32 s3, s3, %d" % WAVES)
    e("  s_add_u32 s3, s3, s%d" % sT)
    e("  s_mul_i32 s%d, s%d, %d" % (sLds, sT, LDSW))
else:
    vLane = 0
    e("  s_lshr_b32 s3, s2, 3")
    e("  s_mov_b32 s%d, 0" % sLds)
e("  s_and_b32 s%d, s2, 3" % sQ)
e("  s_bfe_u32 s%d, s2, 0x10002" % sRow)
e("  s_lshl_b32 s%d, s%d, 13" % (sRow, sRow))
e("  s_lshl2_add_u32 s%d, s3, s%d" % (sRow, sRow))
e("  s_mul_i32 s%d, s%d, 326" % (sOffV, sRow))
e("  s_mov_b32 m0, s%d" % sLds)
e("  s_lshl_b32 s%d, s%d, 1" % (sOffC, sOffV))
e("  v_lshlrev_b32 v%d, 4, v%d" % (vT0, vLane))
e("  s_mov_b32 s%d, %d" % (srdV+2, 16384*326))
e("  s_mov_b32 s%d, 0x20000" % (srdV+3))
e("  s_mov_b32 s%d, %d" % (srdC+2, 16384*652))
e("  s_mov_b32 s%d, 0x20000" % (srdC+3))
e("  s_bfm_b64 s[%d:%d], 35, 0" % (sTail, sTail+1))
e("  s_bfm_b64 s[%d:%d], 18, 0" % (sM, sM+1))
e("  s_waitcnt lgkmcnt(0)")
for srd, p in ((srdC,6),(srdV,4)):
    e("  s_mov_b32 s%d, s%d" % (srd, p))
    e("  s_and_b32 s%d, s%d, 0xffff" % (srd+1, p+1))
e("  buffer_load_dwordx4 v%d, s[%d:%d], s%d offen lds" % (vT0, srdC, srdC+3, sOffC))
e("  buffer_load_dwordx4 v%d, s[%d:%d], s%d offen offset:1024 lds" % (vT0, srdC, srdC+3, sOffC))
e("  s_mov_b64 exec, s[%d:%d]" % (sTail, sTail+1))
e("  buffer_load_dwordx4 v%d, s[%d:%d], s%d offen offset:2048 lds" % (vT0, srdC, srdC+3, sOffC))
e("  s_add_u32 m0, s%d, %d" % (sLds, RAWV))
e("  s_mov_b64 exec, -1")
e("  buffer_load_dwordx4 v%d, s[%d:%d], s%d offen lds" % (vT0, srdV, srdV+3, sOffV))
e("  s_mov_b64 exec, s[%d:%d]" % (sM, sM+1))
e("  buffer_load_dwordx4 v%d, s[%d:%d], s%d offen offset:1024 lds" % (vT0, srdV, srdV+3, sOffV))
e("  s_mov_b64 exec, -1")
for srd, p in ((srdB,8),(srdO,10)):
    e("  s_mov_b32 s%d, s%d" % (srd, p))
    e("  s_and_b32 s%d, s%d, 0xffff" % (srd+1, p+1))
    e("  s_mov_b32 s%d, %d" % (srd+2, 16384*512))
    e("  s_mov_b32 s%d, 0x20000" % (srd+3))
e("  s_lshl_b32 s%d, s%d, 7" % (sQ, sQ))
e("  v_and_b32 v%d, 0x70, v%d" % (vLaneOff, vT0))
e("  v_add_u32 v%d, s%d, v%d" % (vLaneOff, sQ, vLaneOff))
npf = 0
if PREF:
    per = 16384//PREF
    npf = per//8
    e("  s_cmp_ge_u32 s3, %d" % PREF)
    e("  s_cbranch_scc1 L_nopf")
    e("  v_lshrrev_b32 v%d, 3, v%d" % (vT1, vLane))
    e("  s_mul_i32 s%d, s3, %d" % (sT, per*512))
    e("  v_lshl_add_u32 v%d, v%d, 9, v%d" % (vT1, vT1, vLaneOff))
    for i in range(npf):
        e("  buffer_load_dwordx4 v[%d:%d], v%d, s[%d:%d], s%d offen" % (vPF, vPF+3, vT1, srdB, srdB+3, sT))
        if i < npf-1: e("  s_add_u32 s%d, s%d, 4096" % (sT, sT))
    e("  s_waitcnt vmcnt(%d)" % npf)
    e("  s_branch L_pfd")
    e("L_nopf:")
if PREF:
    e("  s_waitcnt vmcnt(0)")
    e("L_pfd:")
e("  v_and_b32 v%d, 1, v%d" % (vA, vLane))
e("  v_lshlrev_b32 v%d, 4, v%d" % (vA, vA))
e("  v_mov_b32 v%d, 0xffff" % (vA+1))
e("  v_lshlrev_b32 v%d, v%d, v%d" % (vA, vA, vA+1))
e("  v_bfe_u32 v%d, v%d, 1, 2" % (vA+1, vLane))
for r in range(4):
    e("  v_cmp_eq_u32 vcc, %d, v%d" % (r, vA+1))
    e("  v_mov_b32 v%d, 0" % (vAcc+r))
    e("  s_nop 0")
    e("  v_cndmask_b32 v%d, 0, v%d, vcc" % (vM+r, vA))
e("  v_add_u32 v%d, s%d, v%d" % (vOut, sLds, vT0))
e("  v_and_b32 v%d, 3, v%d" % (vA, vLane))
e("  v_lshrrev_b32 v%d, 3, v%d" % (vA+1, vLane))
e("  v_lshl_add_u32 v%d, v%d, 3, v%d" % (vA, vA, vA+1))
e("  s_add_u32 s%d, s%d, %d" % (sBase, sLds, LIST))
e("  v_lshl_add_u32 v%d, v%d, 2, s%d" % (vRd, vA, sBase))
e("  v_lshl_add_u32 v%d, v%d, 1, s%d" % (vT0, vLane, sLds))
e("  v_lshl_add_u32 v%d, v%d, 2, s%d" % (vT1, vLane, sLds))
e("  s_mov_b32 s%d, 0x05040100" % sSel)
if not PREF:
    e("  s_waitcnt vmcnt(0)")
if DIAG:
    e("  s_memrealtime s[58:59]")
for r in range(R):
    for b in range(3):
        e("  ds_read_u16 v%d, v%d offset:%d" % (vRawV+3*r+b, vT0, RAWV+326*r+128*b))
        e("  ds_read_b32 v%d, v%d offset:%d" % (vRawC+3*r+b, vT1, 652*r+256*b))
e("  v_add_u32 v%d, %d, v%d" % (vAddr, LIST, vT1))
e("  s_mov_b32 s%d, 0" % sI)
e("  s_mov_b32 s%d, 0" % sPack)
for r in range(R):
    for b in range(3):
        k = 3*r+b
        left = 2*(3*R-1-k)
        e("  s_waitcnt lgkmcnt(%d)" % min(15, left + (3*r if r>0 else 0)))
        e("  v_lshlrev_b32 v%d, 17, v%d" % (vA+b, vRawV+k))
        e("  v_cmp_ne_u32 s[%d:%d], 0, v%d" % (sM+2*b, sM+2*b+1, vA+b))
        e("  v_perm_b32 v%d, v%d, v%d, s%d" % (vRawC+k, vRawV+k, vRawC+k, sSel))
        if b == 2:
            e("  s_and_b64 s[%d:%d], s[%d:%d], s[%d:%d]" % (sM+4, sM+5, sM+4, sM+5, sTail, sTail+1))
    e("  v_mov_b32 v%d, 0xffff" % (vA+3))
    for b in range(3):
        k = 3*r+b
        if OOBZ or b == 2:
            e("  v_cndmask_b32 v%d, v%d, v%d, s[%d:%d]" % (vRawC+k, vA+3, vRawC+k, sM+2*b, sM+2*b+1))
        e("  ds_write_b32 v%d, v%d offset:%d" % (vAddr, vRawC+k, 256*b))
    e("  s_mov_b32 s%d, 8" % sN)
    for b in range(3):
        m = sM + 2*b
        e("  s_flbit_i32_b64 s%d, s[%d:%d]" % (sT, m, m+1))
        e("  s_sub_u32 s%d, %d, s%d" % (sT, 64*(b+1)+7, sT))
        e("  s_cmp_lg_u64 s[%d:%d], 0" % (m, m+1))
        e("  s_cselect_b32 s%d, s%d, s%d" % (sN, sT, sN))
    e("  s_lshr_b32 s%d, s%d, 3" % (sN, sN))
    e("  s_add_u32 s%d, s%d, s%d" % (sI, sI, sN))
    e("  s_lshl_b32 s%d, s%d, 5" % (sT, sN))
    if r < R-1:
        e("  v_add_u32 v%d, s%d, v%d" % (vAddr, sT, vAddr))
    e("  s_lshl_b32 s%d, s%d, %d" % (sN, sN, 8*r))
    e("  s_or_b32 s%d, s%d, s%d" % (sPack, sPack, sN))
e("  s_and_b32 s%d, s%d, 0xff" % (sRem, sPack))
e("  s_sub_u32 s%d, s%d, 1" % (sRem, sRem))
e("  s_lshr_b32 s%d, s%d, 8" % (sPack, sPack))
e("  s_mov_b32 s%d, 0x03020302" % sSel)
if DIAG:
    e("  s_mov_b32 s63, s%d" % sI)
e("  s_waitcnt lgkmcnt(0)")
for g in range(NG):
    e("  ds_read_b32 v%d, v%d offset:%d" % (vA+g, vRd, 128*g))
e("  ds_read_b32 v%d, v%d offset:%d" % (vW, vRd, 128*NG))
e("  v_add_u32 v%d, %d, v%d" % (vRd, 128*(NG+1), vRd))
def issue(t, last_nop=False):
    c = t & 3
    e("  v_add_u32_dpp v%d, v%d, v%d quad_perm:[%d,%d,%d,%d] row_mask:0xf bank_mask:0xf" % (vAddr, vAB, vLaneOff, c,c,c,c))
    b = vBUF + 4*(t % NB)
    e("  buffer_load_dwordx4 v[%d:%d], v%d, s[%d:%d], 0 offen" % (b, b+3, vAddr, srdB, srdB+3))
def prep(src, dstv):
    e("  v_lshlrev_b32_sdwa v%d, 9, v%d dst_sel:DWORD dst_unused:UNUSED_PAD src0_sel:DWORD src1_sel:WORD_0" % (vAB, src))
    e("  v_perm_b32 v%d, v%d, v%d, s%d" % (dstv, src, src, sSel))
e("  s_waitcnt lgkmcnt(1)")
for g in range(NG):
    e("  v_perm_b32 v%d, v%d, v%d, s%d" % (vV+NG-1-g, vA+g, vA+g, sSel))
for t in range(NB):
    if t % 4 == 0:
        e("  v_lshlrev_b32_sdwa v%d, 9, v%d dst_sel:DWORD dst_unused:UNUSED_PAD src0_sel:DWORD src1_sel:WORD_0" % (vAB, vA+t//4))
    e("  s_sub_u32 s%d, s%d, 1" % (sI, sI))
    e("  s_cbranch_scc1 L_dr0")
    issue(t)
def rot():
    for g in range(NG, 0, -1):
        e("  v_mov_b32 v%d, v%d" % (vV+g, vV+g-1))
def ands(t):
    c = t & 3
    for r in range(4):
        e("  v_and_b32_dpp v%d, v%d, v%d quad_perm:[%d,%d,%d,%d] row_mask:0xf bank_mask:0xf" % (vA+r, vV+NG, vM+r, c,c,c,c))
def mfma(t):
    b = vBUF + 4*(t % NB)
    e("  v_mfma_f32_16x16x32_bf16 v[%d:%d], v[%d:%d], v[%d:%d], v[%d:%d]" % (vAcc, vAcc+3, vA, vA+3, b, b+3, vAcc, vAcc+3))
def rowend(lbl, back, final_ok):
    e("%s:" % lbl)
    e("  s_cmp_eq_u32 s%d, 0" % sPack)
    e("  s_cselect_b32 s%d, 1, 0" % sT)
    e("  s_and_b32 s%d, s%d, 0xff" % (sRem, sPack))
    e("  s_sub_u32 s%d, s%d, 1" % (sRem, sRem))
    e("  s_lshr_b32 s%d, s%d, 8" % (sPack, sPack))
    e("  s_nop 3")
    e("  ds_write_b128 v%d, v[%d:%d]" % (vOut, vAcc, vAcc+3))
    if final_ok:
        e("  s_cmp_lg_u32 s%d, 0" % sT)
        e("  s_cbranch_scc1 L_epi")
    else:
        e("  s_nop 1")
    e("  v_add_u32 v%d, 0x400, v%d" % (vOut, vOut))
    for r in range(4):
        e("  v_mov_b32 v%d, 0" % (vAcc+r))
    e("  s_branch %s" % back)
e("L_main:")
for t in range(NB):
    if t % 4 == 0:
        rot()
        e("  s_waitcnt lgkmcnt(0)")
        prep(vW, vV)
        e("  ds_read_b32 v%d, v%d" % (vW, vRd))
        e("  v_add_u32 v%d, 0x80, v%d" % (vRd, vRd))
    ands(t)
    e("  s_sub_u32 s%d, s%d, 1" % (sI, sI))
    e("  s_cbranch_scc1 L_dx%d" % t)
    e("  s_waitcnt vmcnt(%d)" % (NB-1))
    mfma(t)
    issue(t)
    e("  s_sub_u32 s%d, s%d, 1" % (sRem, sRem))
    e("  s_cbranch_scc1 L_re%d" % t)
    e("L_rb%d:" % t)
e("  s_branch L_main")
for t in range(NB):
    rowend("L_re%d" % t, "L_rb%d" % t, False)
for t in range(NB):
    e("L_dr%d:" % t)
    if t % 4 == 0:
        rot()
        e("  s_nop 0")
    ands(t)
    e("L_dx%d:" % t)
    e("  s_waitcnt vmcnt(0)")
    e("  s_nop 0")
    mfma(t)
    e("  s_sub_u32 s%d, s%d, 1" % (sRem, sRem))
    e("  s_cbranch_scc1 L_de%d" % t)
    e("L_db%d:" % t)
e("  s_branch L_dr0")
for t in range(NB):
    rowend("L_de%d" % t, "L_db%d" % t, True)
e("L_epi:")
e("  v_lshrrev_b32 v%d, 4, v%d" % (vA, vLane))
e("  v_bfe_u32 v%d, v%d, 1, 3" % (vA+1, vLane))
e("  v_and_b32 v%d, 1, v%d" % (vA+2, vLane))
e("  v_lshl_add_u32 v%d, v%d, 4, v%d" % (vA+1, vA+2, vA+1))
e("  v_lshl_add_u32 v%d, v%d, 6, v%d" % (vA+1, vA, vA+1))
e("  v_lshl_add_u32 v%d, v%d, 4, s%d" % (vA+1, vA+1, sLds))
e("  ds_read_b128 v[%d:%d], v%d" % (vBUF, vBUF+3, vA+1))
e("  ds_read_b128 v[%d:%d], v%d offset:640" % (vBUF+4, vBUF+7, vA+1))
e("  v_and_b32 v%d, 15, v%d" % (vA+2, vLane))
e("  v_lshlrev_b32 v%d, 9, v%d" % (vA, vA))
e("  v_lshl_add_u32 v%d, v%d, 3, v%d" % (vA, vA+2, vA))
e("  s_lshl_b32 s%d, s%d, 9" % (sT, sRow))
e("  s_add_u32 s%d, s%d, s%d" % (sT, sT, sQ))
e("  s_waitcnt lgkmcnt(0)")
for r in range(4):
    e("  v_add_f32 v%d, v%d, v%d" % (vBUF+r, vBUF+r, vBUF+4+r))
e("  v_cvt_pk_bf16_f32 v%d, v%d, v%d" % (vBUF, vBUF, vBUF+1))
e("  v_cvt_pk_bf16_f32 v%d, v%d, v%d" % (vBUF+1, vBUF+2, vBUF+3))
e("  buffer_store_dwordx2 v[%d:%d], v%d, s[%d:%d], s%d offen" % (vBUF, vBUF+1, vA, srdO, srdO+3, sT))
if DIAG:
    e("  s_memrealtime s[60:61]")
    e("  s_getreg_b32 s62, hwreg(HW_REG_XCC_ID)")
    e("  s_getreg_b32 s57, hwreg(HW_REG_HW_ID)")
    e("  s_waitcnt lgkmcnt(0)")
    e("  s_lshl_b32 s62, s62, 16")
    e("  s_or_b32 s62, s62, s63")
    for i,s in enumerate((56,58,60,62,57)):
        e("  v_mov_b32 v%d, s%d" % (40+i, s))
    for i in range(5,8): e("  v_mov_b32 v%d, 0" % (40+i))
    e("  s_mov_b32 s64, s54")
    e("  s_and_b32 s65, s55, 0xffff")
    e("  s_mov_b32 s66, 0x1000000")
    e("  s_mov_b32 s67, 0x20000")
    e("  v_lshrrev_b32 v48, 6, v0")
    e("  s_mul_i32 s3, s2, %d" % WAVES)
    e("  v_add_u32 v48, s3, v48")
    e("  v_lshlrev_b32 v48, 5, v48")
    e("  v_cmp_eq_u32 vcc, 0, v%d" % vLane)
    e("  s_and_saveexec_b64 s[58:59], vcc")
    e("  buffer_store_dwordx4 v[40:43], v48, s[64:67], 0 offen")
    e("  buffer_store_dwordx4 v[44:47], v48, s[64:67], 0 offen offset:16")
e("L_end:")
e("  s_endpgm")
NV = max(NV, NVG)
NV = (NV+7)//8*8
e('.section .rodata,"a"')
e('.p2align 6')
e('.amdhsa_kernel %s_kernel' % NAME)
e('  .amdhsa_next_free_vgpr %d' % NV)
e('  .amdhsa_next_free_sgpr 72')
e('  .amdhsa_accum_offset %d' % NV)
e('  .amdhsa_group_segment_fixed_size 0')
e('  .amdhsa_kernarg_size 48')
e('  .amdhsa_user_sgpr_count 2')
e('  .amdhsa_user_sgpr_kernarg_segment_ptr 1')
e('  .amdhsa_system_sgpr_workgroup_id_x 1')
e('.end_amdhsa_kernel')
out = sys.argv[1] if len(sys.argv) > 1 else 'cdna_kernels/%s.s' % NAME
open(out, 'w').write('\n'.join(o) + '\n')
```

```python
import os
GRID=1024; LDS=16384; NV=96
RS=int(os.environ.get("RS","1280")); NS=13; TILE=RS*64; PLANE=RS*32
BLKS=1024*13*768; BOFF=224<<20; HOFF=240<<20
MSKB=512; TBL=2048; INFO=2560; SORT=2816
PX=os.environ.get("PX","")
SM=os.environ.get("SM",""); SB=os.environ.get("SB",""); KK=[0]; BF=int(os.environ.get("BF","0"))
def emit(e0,BD):
    def e(l):
        if 'b' in PX and ('s[20:23]' in l or 'buffer_store_dwordx4' in l):
            if 'load' in l: e0("  buffer_load_dword v%d, v%d, s[12:15], 0 offen" % (52,1))
            return
        if 's' in PX and 'buffer_store_dwordx3' in l: return
        if 'buffer_store_dwordx3' in l and SM: l+=' '+SM
        if 'buffer_store_dwordx4' in l and SB: l+=' '+SB
        if BF==2 and l.startswith("  s_waitcnt vmcnt(") and KK[0]: return
        e0(l)
        if 'c' in PX and l=="P_a3:": e0("  s_waitcnt vmcnt(0) lgkmcnt(0)"); e0("  s_endpgm")
    PD=int(os.environ.get("PD","0")); BF=int(os.environ.get("BF","0"))
    def ts(n):
        if PD: e("  s_memrealtime s[%d:%d]" % (62+2*n,63+2*n))
    assert RS%16==0
    vI=8; vV=20; vA=26; vR=38; vB=52; vL=1; vT=2; vU=3; vTm=4; vF=5; vZ=6
    K=823422; K2=(1<<32)//RS+1
    for c in range(16384): assert (c*K2)>>32==c//RS
    for s in range(3072): assert (s*K)>>27==s//163
    G=RS//16; KG=(1<<20)//G+1
    for g in range(1024): assert (g*KG)>>20==g//G
    sW=3
    e('.globl pre_kernel'); e('.p2align 8'); e('.type pre_kernel,@function'); e('pre_kernel:')
    e("  s_cmp_ge_u32 s2, 1024"); e("  s_cbranch_scc1 P_end")
    ts(0)
    e("  s_load_dwordx4 s[4:7], s[0:1], 0")
    e("  s_load_dwordx2 s[8:9], s[0:1], 16")
    e("  s_load_dwordx2 s[10:11], s[0:1], 40")
    e("  v_lshrrev_b32 v%d, 6, v0" % vT)
    e("  v_and_b32 v%d, 63, v0" % vL)
    e("  v_readfirstlane_b32 s%d, v%d" % (sW,vT))
    e("  v_mov_b32 v%d, 0" % vZ); e("  v_mov_b32 v%d, 0" % (vZ+1))
    e("  v_lshlrev_b32 v%d, 3, v0" % vU)
    e("  ds_write_b64 v%d, v[%d:%d]" % (vU,vZ,vZ+1))
    e("  v_lshlrev_b32 v%d, 4, v0" % vT)
    e("  s_mul_i32 s28, s2, 10432"); e("  s_mul_i32 s29, s2, 5216")
    e("  s_add_u32 s30, s28, 4096"); e("  s_add_u32 s31, s28, 8192")
    e("  s_add_u32 s56, s29, 4096")
    e("  v_cmp_gt_u32 vcc, 140, v0")
    e("  v_bfrev_b32 v%d, 1" % vF)
    e("  s_nop 0")
    e("  v_cndmask_b32 v%d, v%d, v%d, vcc" % (vTm,vF,vU))
    e("  v_cndmask_b32 v%d, v%d, v%d, vcc" % (vF,vF,vT))
    e("  s_waitcnt lgkmcnt(0)")
    for b,lo,n in ((12,4,16384*326),(16,6,16384*652),(20,8,1<<23),(24,10,1<<28)):
        e("  s_mov_b32 s%d, s%d" % (b,lo)); e("  s_mov_b32 s%d, s%d" % (b+1,lo+1))
        e("  s_mov_b32 s%d, %d" % (b+2,n)); e("  s_mov_b32 s%d, 0x20000" % (b+3))
    e("  buffer_load_dwordx2 v[%d:%d], v%d, s[12:15], s29 offen" % (vV,vV+1,vU))
    e("  buffer_load_dwordx4 v[%d:%d], v%d, s[16:19], s28 offen" % (vI,vI+3,vT))
    e("  buffer_load_dwordx2 v[%d:%d], v%d, s[12:15], s29 offen offset:2048" % (vV+2,vV+3,vU))
    e("  buffer_load_dwordx4 v[%d:%d], v%d, s[16:19], s30 offen" % (vI+4,vI+7,vT))
    e("  buffer_load_dwordx2 v[%d:%d], v%d, s[12:15], s56 offen" % (vV+4,vV+5,vTm))
    e("  buffer_load_dwordx4 v[%d:%d], v%d, s[16:19], s31 offen" % (vI+8,vI+11,vF))
    vS=60; vD=61
    e("  v_lshrrev_b32 v%d, 3, v%d" % (vT,vL))
    e("  v_and_b32 v%d, 7, v%d" % (vU,vL))
    e("  v_lshlrev_b32 v%d, 4, v%d" % (vS,vU))
    e("  v_lshl_add_u32 v%d, v%d, 9, v%d" % (vS,vT,vS))
    e("  s_lshl_b32 s28, s2, 13"); e("  s_lshl_b32 s29, s%d, 7" % sW); e("  s_add_u32 s28, s28, s29"); e("  s_add_u32 s29, s28, 4096")
    if BF:
        vB=88; vD=87
        e("  s_mov_b32 s61, s28")
    else:
        e("  buffer_load_dwordx4 v[%d:%d], v%d, s[20:23], s28 offen" % (vB,vB+3,vS))
        e("  buffer_load_dwordx4 v[%d:%d], v%d, s[20:23], s29 offen" % (vB+4,vB+7,vS))
    nb=0 if BF else 2
    def bld():
        e("  s_add_u32 s29, s61, 4096")
        e("  buffer_load_dwordx4 v[%d:%d], v%d, s[20:23], s61 offen" % (vB,vB+3,vS))
        e("  buffer_load_dwordx4 v[%d:%d], v%d, s[20:23], s29 offen" % (vB+4,vB+7,vS))
    def bst():
        e("  s_waitcnt vmcnt(0)")
        e("  buffer_store_dwordx4 v[%d:%d], v%d, s[24:27], s57 offen" % (vB,vB+3,vD))
        e("  buffer_store_dwordx4 v[%d:%d], v%d, s[24:27], s57 offen offset:256" % (vB+4,vB+7,vD))
    e("  v_lshlrev_b32 v%d, 5, v%d" % (vD,vT))
    e("  v_and_b32 v%d, 1, v%d" % (vT,vL)); e("  v_lshl_add_u32 v%d, v%d, 4, v%d" % (vD,vT,vD))
    e("  s_mov_b32 s28, %d" % PLANE); e("  s_mov_b32 s29, %d" % (13*TILE))
    e("  v_bfe_u32 v%d, v%d, 1, 1" % (vT,vL)); e("  v_mad_u32_u24 v%d, v%d, s28, v%d" % (vD,vT,vD))
    e("  v_bfe_u32 v%d, v%d, 2, 1" % (vT,vL)); e("  v_mad_u32_u24 v%d, v%d, s29, v%d" % (vD,vT,vD))
    e("  s_mul_i32 s28, s2, %d" % KG); e("  s_lshr_b32 s28, s28, 20")
    e("  s_mul_i32 s28, s28, %d" % (TILE-G*512)); e("  s_lshl_b32 s29, s2, 9"); e("  s_add_u32 s28, s28, s29")
    e("  s_mul_i32 s29, s%d, %d" % (sW,26*TILE)); e("  s_add_u32 s28, s28, s29"); e("  s_add_u32 s57, s28, %d" % BOFF)
    e("  v_mul_u32_u24 v%d, %d, v0" % (vTm,4*K))
    e("  v_mov_b32 v%d, 4" % vF)
    e("  s_mov_b32 s28, %d" % ((-RS)&0xffffffff))
    e("  s_mov_b32 s30, 0x05040100"); e("  s_mov_b32 s31, 0x07060100")
    e("  s_barrier")
    def mk(k,i): return 32+2*(4*k+i)
    for k in range(3):
        KK[0]=(k==2)
        if k==2: e("  s_cmp_eq_u32 s%d, 3" % sW); e("  s_cbranch_scc1 P_a3")
        e("  s_waitcnt vmcnt(%d)" % (5+nb-2*k))
        for i in range(4):
            e("  v_cmp_neq_f16_sdwa s[%d:%d], v%d, v%d src0_sel:WORD_%d src1_sel:DWORD" % (mk(k,i),mk(k,i)+1,vV+2*k+(i>>1),vZ,i&1))
        e("  s_waitcnt vmcnt(%d)" % (4+nb-2*k))
        if BF==2 and k==1: e("  s_waitcnt vmcnt(0)"); bld()
        if k==0: ts(1)
        for i in range(4):
            c=vI+4*k+i; a=vA+4*k+i
            e("  s_mov_b64 exec, s[%d:%d]" % (mk(k,i),mk(k,i)+1))
            e("  v_mul_hi_u32_u24 v%d, %d, v%d" % (vT,K2,c))
            e("  v_lshlrev_b32 v%d, 29, v%d" % (vU,c))
            e("  v_alignbit_b32 v%d, v%d, v%d, 27" % (a,vT,vU))
            e("  ds_add_rtn_u32 v%d, v%d, v%d" % (vR+4*k+i,a,vF))
            e("  v_mad_i32_i24 v%d, v%d, s28, v%d" % (c,vT,c))
            e("  v_add_u32 v%d, %d, v%d" % (vU,(1024*k+i)*K,vTm))
            e("  v_alignbit_b32 v%d, v%d, v%d, 27" % (c,c,vU))
            e("  v_perm_b32 v%d, v%d, v%d, s%d" % (c,vV+2*k+(i>>1),c,30+(i&1)))
        e("  s_mov_b64 exec, -1")
    KK[0]=0
    e("P_a3:")
    ts(2)
    if BF==1: bld()
    if not BF: bst()
    e("  s_cmp_lg_u32 s%d, 0" % sW)
    e("  s_waitcnt lgkmcnt(0)")
    e("  s_barrier")
    ts(3)
    e("  s_cbranch_scc1 P_np")
    c0,c1,x,y,tot,cap=62,63,64,65,66,67; q4=68
    dp="row_mask:0xf bank_mask:0xf"
    e("  v_lshlrev_b32 v%d, 3, v%d" % (vT,vL))
    e("  ds_read_b64 v[%d:%d], v%d" % (c0,c1,vT))
    e("  s_mov_b32 s58, 0x88888888"); e("  s_mov_b32 s59, s58")
    e("  s_waitcnt lgkmcnt(0)")
    e("  v_add_u32 v%d, v%d, v%d" % (x,c0,c1)); e("  s_nop 1")
    e("  v_add_u32_dpp v%d, v%d, v%d quad_perm:[1,0,3,2] %s" % (y,x,x,dp)); e("  s_nop 1")
    e("  v_add_u32_dpp v%d, v%d, v%d quad_perm:[2,3,0,1] %s" % (tot,y,y,dp))
    e("  v_add_u32 v%d, 127, v%d" % (cap,tot)); e("  v_and_b32 v%d, 0xffffff80, v%d" % (cap,cap))
    e("  v_sub_u32 v%d, v%d, v%d" % (y,cap,tot))
    e("  v_cndmask_b32 v%d, 0, v%d, s[58:59]" % (y,y))
    e("  v_add_u32 v%d, v%d, v%d" % (x,x,y))
    e("  v_mov_b32 v%d, v%d" % (y,x))
    for sh in (1,2,4,8):
        e("  s_nop 1"); e("  v_add_u32_dpp v%d, v%d, v%d row_shr:%d %s" % (y,y,y,sh,dp))
    e("  s_nop 1"); e("  v_add_u32_dpp v%d, v%d, v%d row_bcast:15 row_mask:0xa bank_mask:0xf" % (y,y,y))
    e("  s_nop 1"); e("  v_add_u32_dpp v%d, v%d, v%d row_bcast:31 row_mask:0xc bank_mask:0xf" % (y,y,y))
    e("  v_sub_u32 v%d, v%d, v%d" % (y,y,x))
    e("  v_add_u32 v%d, %d, v%d" % (x,SORT,y))
    e("  v_add_u32 v%d, v%d, v%d" % (y,x,c0))
    e("  ds_write_b64 v%d, v[%d:%d] offset:%d" % (vT,x,y,TBL))
    e("  v_add_u32 v%d, v%d, v%d" % (q4,x,tot))
    e("  v_mov_b32 v%d, v%d" % (q4+1,x))
    e("  v_lshrrev_b32 v%d, 3, v%d" % (q4+2,cap))
    e("  v_lshrrev_b32 v%d, 7, v%d" % (cap,cap))
    e("  v_cvt_f32_u32 v%d, v%d" % (y,cap)); e("  v_rcp_f32 v%d, v%d" % (y,y))
    e("  v_mov_b32 v%d, 0x43800000" % tot)
    e("  v_fma_f32 v%d, v%d, v%d, 0.5" % (y,y,tot))
    e("  v_cvt_u32_f32 v%d, v%d" % (y,y))
    e("  v_add_u32 v%d, 1, v%d" % (q4+3,y))
    e("  v_lshlrev_b32 v%d, 2, v%d" % (vT,vL))
    e("  s_lshl_b32 s29, s2, 6"); e("  s_add_u32 s29, s29, %d" % HOFF)
    e("  s_mov_b32 exec_lo, 0x11111111"); e("  s_mov_b32 exec_hi, 0x11111111")
    e("  ds_write_b128 v%d, v[%d:%d] offset:%d" % (vT,q4,q4+3,INFO))
    e("  buffer_store_dword v%d, v%d, s[24:27], s29 offen" % (cap,vL))
    e("  s_mov_b64 exec, -1")
    e("  s_waitcnt lgkmcnt(0)")
    e("P_np:")
    pos1,C1,pos2,C2,b0,b1,vMB,vMr,vL12,d4,dd,vIA=70,71,72,73,74,75,76,77,78,79,80,81
    t1,t2,t3=82,83,84
    e("  v_bfe_u32 v%d, v%d, 4, 1" % (t1,vL))
    e("  v_bfe_u32 v%d, v%d, 2, 2" % (t2,vL))
    e("  v_and_b32 v%d, 3, v%d" % (t3,vL))
    e("  v_lshl_add_u32 v%d, v%d, 2, v%d" % (pos1,t1,t2))
    e("  v_and_b32 v%d, 1, v%d" % (pos2,vL)); e("  v_lshlrev_b32 v%d, 1, v%d" % (pos2,pos2))
    e("  v_lshl_add_u32 v%d, v%d, 2, v%d" % (pos2,t1,pos2))
    e("  v_lshrrev_b32 v%d, 5, v%d" % (t1,vL))
    e("  v_lshlrev_b32 v%d, 3, v%d" % (C1,t1))
    e("  v_lshl_add_u32 v%d, v%d, 4, v%d" % (C2,t2,C1))
    e("  v_lshl_add_u32 v%d, v%d, 4, v%d" % (C1,t3,C1))
    e("  v_bfe_u32 v%d, v%d, 1, 1" % (b0,vL)); e("  v_lshl_add_u32 v%d, v%d, 2, v%d" % (C2,b0,C2))
    e("  v_lshlrev_b32 v%d, 6, v%d" % (vIA,t1))
    e("  s_lshl_b32 s29, s%d, 4" % sW); e("  v_add_u32 v%d, s29, v%d" % (vIA,vIA))
    e("  v_bfe_u32 v%d, v%d, 2, 1" % (b0,vL)); e("  v_lshl_add_u32 v%d, v%d, 4, 15" % (b0,b0))
    e("  v_and_b32 v%d, 8, v%d" % (b1,vL)); e("  v_sub_u32 v%d, v%d, v%d" % (b0,b0,b1))
    e("  v_lshlrev_b32 v%d, 1, v%d" % (t3,t3)); e("  v_sub_u32 v%d, v%d, v%d" % (b0,b0,t3))
    e("  v_lshlrev_b32 v%d, v%d, 1" % (b0,b0)); e("  v_lshrrev_b32 v%d, 1, v%d" % (b1,b0))
    e("  s_lshl_b32 s29, s%d, 8" % sW); e("  s_add_u32 s29, s29, %d" % MSKB)
    e("  v_lshl_add_u32 v%d, v%d, 2, s29" % (vMr,vL))
    e("  v_and_b32 v%d, 0xffffffc0, v%d" % (vMB,vMr))
    e("  v_mul_u32_u24 v%d, 12, v%d" % (vL12,vL))
    e("  v_bfe_u32 v%d, v%d, 2, 3" % (d4,vL))
    e("  v_and_b32 v%d, 31, v%d" % (dd,vL)); e("  v_lshlrev_b32 v%d, 2, v%d" % (dd,dd))
    e("  s_barrier")
    ts(4)
    vTb=52
    def pr(n):
        e("  s_mov_b64 exec, s[%d:%d]" % (32+2*n,33+2*n))
        e("  ds_read_b32 v%d, v%d offset:%d" % (vTb+n,vA+n,TBL))
    for n in range(8): pr(n)
    e("  s_cmp_eq_u32 s%d, 3" % sW); e("  s_cbranch_scc1 P_b3")
    for n in range(8,12): pr(n)
    e("  s_waitcnt lgkmcnt(0)")
    def pb(n):
        e("  s_mov_b64 exec, s[%d:%d]" % (32+2*n,33+2*n))
        e("  v_add_u32 v%d, v%d, v%d" % (vTb+n,vTb+n,vR+n))
        e("  ds_write_b32 v%d, v%d" % (vTb+n,vI+n))
    for n in range(8,12): pb(n)
    e("P_b3:")
    e("  s_waitcnt lgkmcnt(4)" if False else "  s_waitcnt lgkmcnt(0)")
    for n in range(8): pb(n)
    e("  s_mov_b64 exec, -1")
    i0,i1=8,12
    e("  ds_read_b128 v[%d:%d], v%d offset:%d" % (i0,i0+3,vIA,INFO))
    e("  ds_read_b128 v[%d:%d], v%d offset:%d" % (i1,i1+3,vIA,INFO+128))
    e("  s_mov_b32 s28, 256")
    e("  s_waitcnt lgkmcnt(0)")
    for r,ii in enumerate((i0,i1)):
        A,off,S4,M=ii,ii+1,ii+2,ii+3; t=16+r
        e("  v_mad_u32_u24 v%d, v%d, v%d, s28" % (M,d4,M))
        e("  v_lshrrev_b32 v%d, 8, v%d" % (M,M))
        e("  v_add_u32 v%d, v%d, v%d" % (A,A,dd))
        e("  v_mul_u32_u24 v%d, v%d, v%d" % (M,M,S4))
        e("  v_sub_u32 v%d, v%d, v%d" % (M,A,M))
        e("  v_max_i32 v%d, v%d, v%d" % (M,M,off))
        e("  v_lshl_add_u32 v%d, v%d, 3, v%d" % (t,S4,off))
        e("  v_cmp_lt_u32 s[%d:%d], v%d, v%d" % (32+2*r,33+2*r,A,t))
    for j in range(4):
        ii=(i0,i1)[j>>1]
        e("  v_readlane_b32 s%d, v%d, %d" % (40+j,ii+1,32*(j&1)))
        e("  v_readlane_b32 s%d, v%d, %d" % (44+j,ii+2,32*(j&1)))
    e("  s_mul_i32 s48, s2, %d" % (13*768)); e("  s_mul_i32 s29, s%d, 768" % sW); e("  s_add_u32 s48, s48, s29")
    e("  s_mov_b32 s60, 0xffe0ffe0")
    e("  s_barrier")
    ts(5)
    for r,ii in enumerate((i0,i1)): e("  ds_read_u16 v%d, v%d" % (16+r,ii+3))
    aj=[(20+3*j,21+3*j,22+3*j) for j in range(4)]
    for j in range(4):
        a1,a2,a3=aj[j]
        e("  v_mad_u32_u24 v%d, v%d, s%d, v%d" % (a1,pos1,44+j,C1))
        e("  v_mad_u32_u24 v%d, v%d, s%d, v%d" % (a2,pos2,44+j,C2))
        e("  v_add_u32 v%d, s%d, v%d" % (a1,40+j,a1))
        e("  v_add_u32 v%d, s%d, v%d" % (a2,40+j,a2))
        e("  v_add_u32 v%d, s%d, v%d" % (a3,44+j,a2))
    e("  s_waitcnt lgkmcnt(0)")
    for r,ii in enumerate((i0,i1)):
        e("  s_mov_b64 exec, s[%d:%d]" % (32+2*r,33+2*r))
        e("  ds_write_b32 v%d, v%d" % (ii,16+r))
    e("  s_mov_b64 exec, -1")
    def rd(j):
        a1,a2,a3=aj[j]; E=32+2*j; O=40+4*j
        e("  ds_read_b64 v[%d:%d], v%d" % (E,E+1,a1))
        e("  ds_read_u16 v%d, v%d offset:2" % (O+1,a2))
        e("  ds_read_b32 v%d, v%d" % (O+3,a3))
    def cp(j):
        E=32+2*j; O=40+4*j
        e("  v_and_b32 v%d, 15, v%d" % (t1,E)); e("  v_and_b32 v%d, 15, v%d" % (t2,E+1))
        e("  v_lshl_add_u32 v%d, v%d, 2, v%d" % (t1,t1,vMB)); e("  v_lshl_add_u32 v%d, v%d, 2, v%d" % (t2,t2,vMB))
        e("  ds_or_b32 v%d, v%d" % (t1,b0)); e("  ds_or_b32 v%d, v%d" % (t2,b1))
        e("  ds_wrxchg_rtn_b32 v%d, v%d, v%d" % (O+2,vMr,vZ))
        e("  v_perm_b32 v%d, v%d, v%d, s30" % (O,E+1,E))
        e("  v_perm_b32 v%d, v%d, v%d, s31" % (O+1,O+3,O+1))
        e("  v_and_b32 v%d, s60, v%d" % (O,O))
    def st(j,so): e("  buffer_store_dwordx3 v[%d:%d], v%d, s[24:27], s%d offen" % (40+4*j,42+4*j,vL12,so))
    for j in range(4): rd(j)
    if BF: bst()
    for j in range(3):
        e("  s_waitcnt lgkmcnt(9)")
        cp(j)
    for j in range(1,4): e("  s_add_u32 s%d, s48, %d" % (48+j,j*4*768))
    e("  s_cmp_lg_u32 s%d, 0" % sW)
    e("  s_cbranch_scc1 P_c3")
    e("  s_waitcnt lgkmcnt(9)")
    cp(3)
    e("  s_waitcnt lgkmcnt(0)")
    st(3,51)
    e("P_c3:")
    e("  s_waitcnt lgkmcnt(0)")
    for j in range(3): st(j,48+j)
    if PD:
        ts(6); e("  s_waitcnt vmcnt(0)"); ts(7); e("  s_waitcnt lgkmcnt(0)")
        for n in range(8): e("  v_writelane_b32 v2, s%d, %d" % (62+2*n,n))
        e("  s_lshl_b32 s29, s2, 10"); e("  s_add_u32 s29, s29, %d" % (250<<20))
        e("  v_lshlrev_b32 v0, 2, v0"); e("  buffer_store_dword v2, v0, s[24:27], s29 offen")
    for j in range(4):
        a1,a2,a3=aj[j]
        if j==3: e("  s_cmp_lg_u32 s%d, 0" % sW); e("  s_cbranch_scc1 P_end")
        e("  s_min_u32 s%d, s%d, %d" % (44+j,44+j,84*16))
        e("P_l%d:" % j)
        e("  s_cmp_le_u32 s%d, 64" % (44+j)); e("  s_cbranch_scc1 P_d%d" % j)
        e("  s_sub_u32 s%d, s%d, 64" % (44+j,44+j))
        for a in (a1,a2,a3): e("  v_add_u32 v%d, 64, v%d" % (a,a))
        e("  s_add_u32 s%d, s%d, %d" % (48+j,48+j,BLKS))
        e("  s_waitcnt vmcnt(0)")
        rd(j); e("  s_waitcnt lgkmcnt(0)"); cp(j); e("  s_waitcnt lgkmcnt(0)"); st(j,48+j)
        e("  s_branch P_l%d" % j)
        e("P_d%d:" % j)
    e("P_end:")
    e("  s_endpgm")
```

```python
import sys, os
NAME = "standalone__sparse_matmul_formats_ell__sparse_mat"
BD   = int(os.environ.get("BD","0"))
PRE  = int(os.environ.get("PRE","0"))
ASHR = os.environ.get("ASHR","pk")
NOMM = int(os.environ.get("NOMM","0"))
NODMA= int(os.environ.get("NODMA","0"))
NOSTR=int(os.environ.get("NOSTR","0"))
NOBAR=int(os.environ.get("NOBAR","0"))
NORD=int(os.environ.get("NORD","0"))
DIAG=int(os.environ.get('DIAG','0'))
def ts(lane):
    if not DIAG: return
    e('  s_memrealtime s[40:41]'); e('  s_waitcnt lgkmcnt(0)')
    if isinstance(lane,int): e('  v_writelane_b32 v%d, s40, %d' % (vTS,lane))
    else:
        e('  s_mov_b32 s42, m0'); e('  s_add_u32 m0, %s' % lane); e('  s_nop 0'); e('  v_writelane_b32 v%d, s40, m0' % vTS); e('  s_mov_b32 m0, s42')
NS=13; RS=1280; TILE=81920; PLANE=40960
BLKS=1024*13*768; BOFF=224<<20; HOFF=240<<20
o=[]
def e(s): o.append(s)
HDR = open('cdna_kernels/%s.s.ref' % NAME).read().split('\n')
for l in HDR[:8]:
    if l.startswith('; Override') or l.startswith('; @launch'): break
    e(l)
if PRE:
    import gen_pre
    e("; @launch kernel=pre_kernel grid=(%d,1,1) block=(256,1,1) lds=%d" % (gen_pre.GRID, gen_pre.LDS))
    e("; @launch kernel=%s_kernel grid=(256,1,1) block=(1024,1,1) lds=163840" % NAME)
else:
    e("; @launch grid=(256,1,1) block=(1024,1,1) lds=163840")
e('.amdgcn_target "amdgcn-amd-amdhsa--gfx950"')
e('.text')
e('.globl %s_kernel' % NAME)
e('.p2align 8')
e('.type %s_kernel,@function' % NAME)
e('%s_kernel:' % NAME)
GR='abc'
PRIO=int(os.environ.get('PRIO','1'))
ACC={'a':4,'b':12,'c':20}
CUR={'a':(28,52),'b':(32,56),'c':(36,60)}
NXT={'a':(40,64),'b':(44,68),'c':(48,72)}
vLB,vSO,vCNT,vL,vT,vDO=55,59,63,67,71,75
vA=(76,80); vB=84; vAD=76; vS=116; vK4=120; vQ=120; vM0=2
vTS=1
NV=124
sP,sSO,sDO,sM,sBk,sT,sT2,sCS,sRG,sW=16,17,18,19,24,25,26,27,28,29
sN={'a':20,'b':21,'c':22}; sNN={'a':44,'b':45,'c':46}
GOFF={'a':0,'b':12*13*768,'c':24*13*768}
e("  s_cmp_ge_u32 s2, 256")
e("  s_cbranch_scc1 L_end")
ts(0)
e("  s_load_dwordx2 s[34:35], s[0:1], 24")
e("  s_load_dwordx2 s[36:37], s[0:1], 40")
e("  v_lshrrev_b32 v%d, 6, v0" % vT)
e("  v_and_b32 v%d, 63, v0" % vL)
e("  v_readfirstlane_b32 s%d, v%d" % (sW,vT))
e("  s_and_b32 s%d, s2, 3" % sCS)
e("  s_lshl_b32 s%d, s%d, 1" % (sCS,sCS))
e("  s_bfe_u32 s3, s2, 0x10003")
e("  s_add_u32 s%d, s%d, s3" % (sCS,sCS))
e("  s_bfe_u32 s%d, s2, 0x10002" % sRG)
e("  s_lshl_b32 s%d, s%d, 4" % (sRG,sRG))
e("  s_lshr_b32 s3, s2, 4")
e("  s_add_u32 s%d, s%d, s3" % (sRG,sRG))
e("  s_lshl_b32 s%d, s%d, 5" % (sRG,sRG))
e("  s_add_u32 s%d, s%d, s%d" % (sRG,sRG,sW))
e("  s_mul_i32 s%d, s%d, %d" % (sSO,sRG,13*768))
e("  s_lshl_b32 s%d, s%d, 6" % (sT2,sRG))
e("  s_add_u32 s%d, s%d, %d" % (sT2,sT2,HOFF))
e("  v_lshrrev_b32 v%d, 4, v%d" % (vT,vL))
e("  v_mul_u32_u24 v%d, %d, v%d" % (vT,12*64-64,vT))
e("  v_lshl_add_u32 v%d, v%d, 2, v%d" % (vT,vL,vT))
e("  v_mul_u32_u24 v%d, 12, v%d" % (vSO,vL))
e("  v_and_b32 v%d, 3, v%d" % (vLB,vL))
e("  v_lshlrev_b32 v%d, 3, v%d" % (vLB,vLB))
e("  s_mul_i32 s%d, s%d, 5120" % (sM,sW))
e("  v_lshlrev_b32 v%d, 4, v%d" % (vDO,vL))
e("  s_mul_i32 s%d, s%d, %d" % (sDO,sCS,13*TILE))
e("  s_add_u32 s%d, s%d, %d" % (sDO,sDO,BOFF))
e("  s_add_u32 s3, s%d, s%d" % (sDO,sM))
e("  s_waitcnt lgkmcnt(0)")
e("  s_mov_b32 s4, s36"); e("  s_mov_b32 s5, s37"); e("  s_mov_b32 s6, 0x10000000"); e("  s_mov_b32 s7, 0x20000")
e("  s_mov_b32 s8, s34"); e("  s_mov_b32 s9, s35"); e("  s_mov_b32 s10, 0x800000"); e("  s_mov_b32 s11, 0x20000")
ts(1)
e("  s_mov_b32 m0, s%d" % sM)
e("  s_add_u32 s%d, s3, 4096" % sT)
for i in range(4): e("  buffer_load_dwordx4 v%d, s[4:7], s3 offen offset:%d lds" % (vDO,i*1024))
e("  s_add_u32 m0, s%d, 4096" % sM)
e("  s_cmp_lt_u32 s%d, 12" % sW)
e("  buffer_load_dwordx4 v%d, s[4:7], s%d offen lds" % (vDO,sT))
e("  s_cbranch_scc1 L_comp")
e("  s_sub_u32 s%d, s%d, 12" % (sW,sW))
e("  s_mul_i32 s%d, s%d, 20480" % (sM,sW))
e("  s_add_u32 s%d, s%d, s%d" % (sDO,sDO,sM))
e("  s_add_u32 s30, s%d, %d" % (sM,TILE))
e("  s_xor_b32 s30, s30, s%d" % sM)
RST=int(os.environ.get("RST","0")); LPR=int(os.environ.get("LPR","3")); AO=int(os.environ.get("AO","0"))
if RST:
  vR=4
  def lds_():
    e("  s_add_u32 s%d, s%d, %d" % (sDO,sDO,TILE))
    for k in range(5):
      e("  s_add_u32 s%d, s%d, %d" % (sT,sDO,k*4096))
      for i in range(4): e("  buffer_load_dwordx4 v[%d:%d], v%d, s[4:7], s%d offen offset:%d" % (vR+16*k+4*i,vR+16*k+4*i+3,vDO2,sT,i*1024))
  vDO2=88; vWA=89
  e("  s_setprio %d" % LPR)
  e("  v_mov_b32 v%d, v%d" % (vDO2,vDO))
  e("  v_add_u32 v%d, s%d, v%d" % (vWA,sM,vDO))
  lds_()
  e("  s_mov_b32 s%d, 1" % sP)
  e("  s_waitcnt vmcnt(20)")
  e("  s_barrier")
  e("L_load:")
  e("  v_xor_b32 v%d, s30, v%d" % (vWA,vWA))
  for n in range(20):
    e("  s_waitcnt vmcnt(%d)" % (19-n))
    if not NODMA: e("  ds_write_b128 v%d, v[%d:%d] offset:%d" % (vWA,vR+4*n,vR+4*n+3,n*1024))
  e("  s_add_u32 s%d, s%d, 1" % (sP,sP))
  e("  s_cmp_ge_u32 s%d, %d" % (sP,NS))
  e("  s_waitcnt lgkmcnt(0)")
  e("  s_cbranch_scc1 L_lend")
  lds_()
  e("  s_barrier")
  e("  s_branch L_load")
  e("L_lend:")
  e("  s_barrier")
  e("  s_branch L_fin")
else:
  e("  s_mov_b32 s%d, 1" % sP)
  e("  s_waitcnt vmcnt(0)")
  e("  s_barrier")
  e("L_load:")
  e("  s_xor_b32 s%d, s%d, s30" % (sM,sM))
  e("  s_add_u32 s%d, s%d, %d" % (sDO,sDO,TILE))
  if not NODMA:
    for k in range(5):
      e("  s_add_u32 m0, s%d, %d" % (sM,k*4096))
      e("  s_add_u32 s%d, s%d, %d" % (sT,sDO,k*4096))
      for i in range(4): e("  buffer_load_dwordx4 v%d, s[4:7], s%d offen offset:%d lds" % (vDO,sT,i*1024))
  e("  s_add_u32 s%d, s%d, 1" % (sP,sP))
  e("  s_cmp_lt_u32 s%d, %d" % (sP,NS))
  e("  s_waitcnt vmcnt(0)")
  ts("s16, 30")
  e("  s_barrier")
  e("  s_cbranch_scc1 L_load")
  e("  s_branch L_fin")
e("L_comp:")
if PRIO: e("  s_setprio %d" % PRIO)
e("  buffer_load_dword v%d, v%d, s[4:7], s%d offen" % (vCNT,vT,sT2))
def ld(r,so): e("  buffer_load_dwordx3 v[%d:%d], v%d, s[4:7], s%d offen" % (r,r+2,vSO,so))
def stream(tag, first):
    if NOSTR and not first:
        for X in GR: e("  s_mov_b32 s%d, %s" % (sNN[X], '4' if X!='c' else 's47'))
        return
    if not first:
        for k,X in enumerate(GR):
            if k: e("  s_add_u32 s%d, s%d, %d" % (sT,sP,16*k))
            e("  v_readlane_b32 s%d, v%d, s%d" % (sNN[X],vCNT,sT if k else sP))
    for X in GR:
        if X=='c':
            e("  s_cmp_ge_u32 s%d, 8" % sW); e("  s_cbranch_scc1 L_noc%s" % tag)
        e("  s_add_u32 s%d, s%d, %d" % (sT,sSO,GOFF[X]))
        ld(NXT[X][0],sT)
        if not first:
            e("  s_cmp_le_u32 s%d, 4" % sNN[X])
            e("  s_cbranch_scc1 L_ns%s%s" % (X,tag))
        e("  s_add_u32 s%d, s%d, %d" % (sT,sT,BLKS))
        ld(NXT[X][1],sT)
        e("L_ns%s%s:" % (X,tag))
    e("L_noc%s:" % tag)
    e("  s_add_u32 s%d, s%d, 768" % (sSO,sSO))
e("  s_mov_b32 s%d, 0" % sP)
stream('0',True)
for X in GR:
    for i in range(8): e("  v_mov_b32 v%d, 0" % (ACC[X]+i))
e("  s_cmp_ge_u32 s%d, 8" % sW)
e("  s_cselect_b32 s47, 0, 4")
e("  s_cselect_b32 s3, 32, 64")
e("  v_cmp_gt_u32 vcc, s3, v%d" % vL)
e("  s_waitcnt vmcnt(0)")
e("  s_nop 0")
e("  v_cndmask_b32 v%d, 0, v%d, vcc" % (vCNT,vCNT))
e("  v_min_u32 v%d, 84, v%d" % (vCNT,vCNT))
e("  s_nop 1")
for k,X in enumerate(GR): e("  v_readlane_b32 s%d, v%d, %d" % (sNN[X],vCNT,16*k))
ts(2)
if not int(os.environ.get("EARLY","1")): e("  s_barrier")
def abuild(W,x,A):
    ops=[]
    srcs=[]
    for ih in range(2):
        p=2*x+ih; src=W+2
        if p: ops.append("  v_lshlrev_b64 v[%d:%d], %d, v[%d:%d]" % (vS+2*ih,vS+2*ih+1,p,W+2,W+3)); src=vS+2*ih
        srcs+= [src,src+1]
    for i in range(4): ops.append("  v_pk_ashrrev_i16 v%d, 15, v%d op_sel_hi:[0,1]" % (vK4+i,srcs[i]))
    for i in range(4): ops.append("  v_and_b32_dpp v%d, v%d, v%d row_newbcast:%d row_mask:0xf bank_mask:0xf" % (A+i,W+1,vK4+i,4*x+i))
    return [] if NOMM else ops
def block(W,acc,n):
    if AO:
        e("  v_and_b32 v%d, 0xffff, v%d" % (vQ,W)); e("  v_lshrrev_b32 v%d, 16, v%d" % (vQ+1,W))
    for x in range(0 if AO else n): e("  v_mov_b32_dpp v%d, v%d quad_perm:[%d,%d,%d,%d] row_mask:0xf bank_mask:0xf" % (vQ+x,W,x,x,x,x))
    e("  v_lshlrev_b32 v%d, 8, v%d" % (W+3,W+2))
    for x in range(n):
        a=vAD+2*x
        if BD:
            e("  v_mad_u32_u16 v%d, v%d, 2, v%d op_sel:[0,0,0,0]" % (a,vQ+x,vLB))
            e("  v_mad_u32_u16 v%d, v%d, 2, v%d op_sel:[1,0,0,0]" % (a+1,vQ+x,vLB))
            e("  v_xor_b32 v%d, 32, v%d" % (a+2,a))
            e("  v_xor_b32 v%d, 32, v%d" % (a+3,a+1))
            for q in range(4): e("  ds_read_b64_tr_b16 v[%d:%d], v%d" % (vB+8*x+2*q,vB+8*x+2*q+1,a+q))
        else:
            if AO and x==0: e("  s_nop 0")
            for h in range(2):
                if AO: e("  v_add_u32_dpp v%d, v%d, v%d quad_perm:[%d,%d,%d,%d] row_mask:0xf bank_mask:0xf" % (a+h,vQ+h,vLB,x,x,x,x)); continue
                e("  v_add_u32_sdwa v%d, v%d, v%d dst_sel:DWORD dst_unused:UNUSED_PAD src0_sel:WORD_%d src1_sel:DWORD" % (a+h,vQ+x,vLB,h))
            for q in range(0 if NORD else 4): e("  ds_read_b64_tr_b16 v[%d:%d], v%d offset:%d" % (vB+8*x+2*q,vB+8*x+2*q+1,a+(q&1),PLANE*(q>>1)))
    for op in abuild(W,0,vA[0]): e(op)
    for x in range(n):
        A=vA[x&1]
        nx = abuild(W,x+1,vA[(x+1)&1]) if x+1<n else []
        for op in nx[:5]: e(op)
        e("  s_waitcnt lgkmcnt(%d)" % (4*(n-1-x)+2))
        if not nx: e("  s_nop 0")
        e("  v_mfma_f32_16x16x32_bf16 v[%d:%d], v[%d:%d], v[%d:%d], v[%d:%d]" % (acc,acc+3,vB+8*x,vB+8*x+3,A,A+3,acc,acc+3))
        for op in nx[5:]: e(op)
        e("  s_waitcnt lgkmcnt(%d)" % (4*(n-1-x)))
        e("  v_mfma_f32_16x16x32_bf16 v[%d:%d], v[%d:%d], v[%d:%d], v[%d:%d]" % (acc+4,acc+7,vB+8*x+4,vB+8*x+7,A,A+3,acc+4,acc+7))
EARLY=int(os.environ.get("EARLY","1"))
def pre(t):
    global CUR,NXT
    CUR,NXT = NXT,CUR
    for X in GR: e("  s_mov_b32 s%d, s%d" % (sN[X],sNN[X]))
    e("  s_add_u32 s%d, s%d, 1" % (sP,sP))
    e("  s_mov_b32 s31, s%d" % sSO)
    e("  s_cmp_ge_u32 s%d, %d" % (sP,NS))
    e("  s_cbranch_scc1 L_nopf%s" % t)
    stream('1'+t,False)
    e("L_nopf%s:" % t)
def phase(par):
    t=str(par)
    e("L_phase%s:" % t)
    ts("s16, 48")
    if not EARLY: pre(t)
    for X in GR:
        sn=sN[X]; L=X+t; W=CUR[X][0]; acc=ACC[X]
        e("  s_mov_b32 s%d, 0" % sBk)
        e("L_blk%s:" % L)
        e("  s_cmp_ge_u32 s%d, 4" % sn); e("  s_cbranch_scc1 L_v4%s" % L)
        e("  s_cmp_eq_u32 s%d, 3" % sn); e("  s_cbranch_scc1 L_v3%s" % L)
        e("  s_cmp_eq_u32 s%d, 2" % sn); e("  s_cbranch_scc1 L_v2%s" % L)
        e("  s_cmp_eq_u32 s%d, 0" % sn); e("  s_cbranch_scc1 L_done%s" % L)
        block(W,acc,1); e("  s_branch L_done%s" % L)
        e("L_v2%s:" % L); block(W,acc,2); e("  s_branch L_done%s" % L)
        e("L_v3%s:" % L); block(W,acc,3); e("  s_branch L_done%s" % L)
        e("L_slow%s:" % L)
        e("  s_mul_i32 s%d, s%d, %d" % (sT,sBk,BLKS))
        e("  s_add_u32 s%d, s%d, s31" % (sT,sT))
        e("  s_add_u32 s%d, s%d, %d" % (sT,sT,(GOFF[X]-768)&0xffffffff))
        ld(W,sT)
        e("  s_waitcnt vmcnt(0)")
        e("  s_branch L_blk%s" % L)
        e("L_v4%s:" % L); block(W,acc,4)
        e("  s_sub_u32 s%d, s%d, 4" % (sn,sn))
        e("  s_cmp_eq_u32 s%d, 0" % sn); e("  s_cbranch_scc1 L_done%s" % L)
        e("  s_add_u32 s%d, s%d, 1" % (sBk,sBk))
        e("  s_cmp_lg_u32 s%d, 1" % sBk); e("  s_cbranch_scc1 L_slow%s" % L)
        for i in range(3): e("  v_mov_b32 v%d, v%d" % (W+i,CUR[X][1]+i))
        e("  s_branch L_blk%s" % L)
        e("L_done%s:" % L)
    ts("s16, 15")
    if par==0:
        e("  s_cmp_ge_u32 s%d, %d" % (sP,NS))
        e("  s_cbranch_scc1 L_epi")
    e("  v_xor_b32 v%d, 0x%x, v%d" % (vLB,TILE,vLB))
    e("  s_waitcnt vmcnt(%d)" % 0)
    if EARLY: pre(t+'e')
    ts("s16, 31")
    if not NOBAR: e("  s_barrier")
ORD=os.environ.get("ORD","cab"); DP=os.environ.get("DP","321")
SET=[(NXT,sNN),(CUR,sN)]
def fetch(X,par,d,tag):
    R,C=SET[par]; k=GR.index(X)
    if X=='c': e("  s_cmp_ge_u32 s%d, 8" % sW); e("  s_cbranch_scc1 L_nf%s" % tag)
    e("  s_add_u32 s%d, s%d, %d" % (sT2,sP,16*k+d))
    e("  s_add_u32 s%d, s%d, %d" % (sT,sSO,GOFF[X]+768*d))
    e("  v_readlane_b32 s%d, v%d, s%d" % (C[X],vCNT,sT2))
    ld(R[X][0],sT)
    e("  s_cmp_le_u32 s%d, 4" % C[X]); e("  s_cbranch_scc1 L_nf%s" % tag)
    e("  s_add_u32 s%d, s%d, %d" % (sT,sT,BLKS))
    ld(R[X][1],sT)
    e("L_nf%s:" % tag)
def phase2(par):
    t=str(par); R,C=SET[par]
    e("L_phase%s:" % t)
    ts("s16, 49")
    for n,X in enumerate(ORD):
        sn=C[X]; L=X+t; W=R[X][0]; acc=ACC[X]
        if DP: e("  s_setprio %s" % DP[n])
        e("  s_mov_b32 s%d, 0" % sBk)
        e("L_blk%s:" % L)
        e("  s_cmp_ge_u32 s%d, 4" % sn); e("  s_cbranch_scc1 L_v4%s" % L)
        e("  s_cmp_eq_u32 s%d, 3" % sn); e("  s_cbranch_scc1 L_v3%s" % L)
        e("  s_cmp_eq_u32 s%d, 2" % sn); e("  s_cbranch_scc1 L_v2%s" % L)
        e("  s_cmp_eq_u32 s%d, 0" % sn); e("  s_cbranch_scc1 L_done%s" % L)
        block(W,acc,1); e("  s_branch L_done%s" % L)
        e("L_v2%s:" % L); block(W,acc,2); e("  s_branch L_done%s" % L)
        e("L_v3%s:" % L); block(W,acc,3); e("  s_branch L_done%s" % L)
        e("L_slow%s:" % L)
        e("  s_mul_i32 s%d, s%d, %d" % (sT,sBk,BLKS))
        e("  s_add_u32 s%d, s%d, s%d" % (sT,sT,sSO))
        e("  s_add_u32 s%d, s%d, %d" % (sT,sT,GOFF[X]))
        ld(W,sT)
        e("  s_waitcnt vmcnt(0)")
        e("  s_branch L_blk%s" % L)
        e("L_more%s:" % L)
        e("  s_add_u32 s%d, s%d, 1" % (sBk,sBk))
        e("  s_cmp_lg_u32 s%d, 1" % sBk); e("  s_cbranch_scc1 L_slow%s" % L)
        for i in range(3): e("  v_mov_b32 v%d, v%d" % (W+i,R[X][1]+i))
        e("  s_branch L_blk%s" % L)
        e("L_v4%s:" % L); block(W,acc,4)
        e("  s_sub_u32 s%d, s%d, 4" % (sn,sn))
        e("  s_cmp_lg_u32 s%d, 0" % sn); e("  s_cbranch_scc1 L_more%s" % L)
        e("L_done%s:" % L)
        fetch(X,par,2,L)
    ts("s16, 16")
    if par==0:
        e("  s_cmp_ge_u32 s%d, %d" % (sP,NS-1))
        e("  s_cbranch_scc1 L_epi")
    e("  s_add_u32 s%d, s%d, 1" % (sP,sP))
    e("  s_add_u32 s%d, s%d, 768" % (sSO,sSO))
    e("  v_xor_b32 v%d, 0x%x, v%d" % (vLB,TILE,vLB))
    e("  s_waitcnt vmcnt(2)")
    if not NOBAR: e("  s_barrier")
if EARLY==2:
    e("  s_sub_u32 s%d, s%d, 768" % (sSO,sSO))
    e("  s_mov_b32 s%d, 0" % sN['c'])
    for X in GR: fetch(X,1,1,'p'+X)
    e("  s_barrier")
    phase2(0); phase2(1)
else:
    if EARLY: pre('s'); e("  s_barrier")
    phase(0); phase(1)
e("  s_branch L_phase0")
e("L_epi:")
e("  v_and_b32 v%d, 15, v%d" % (vT,vL))
e("  v_lshlrev_b32 v%d, 9, v%d" % (vT,vT))
e("  v_lshrrev_b32 v%d, 4, v%d" % (vM0,vL))
e("  v_lshl_add_u32 v%d, v%d, 3, v%d" % (vT,vM0,vT))
e("  s_lshl_b32 s%d, s%d, 13" % (sT,sRG))
e("  s_lshl_b32 s3, s%d, 6" % sCS)
e("  s_add_u32 s%d, s%d, s3" % (sT,sT))
e("  s_nop 7")
for X in GR:
    so=sT
    if X!='a': e("  s_add_u32 s%d, s%d, %d" % (sT,sT,12*8192))
    if X=='c': e("  s_cmp_ge_u32 s%d, 8" % sW); e("  s_cbranch_scc1 L_fin")
    for h in range(2):
        a=ACC[X]+4*h
        e("  v_cvt_pk_bf16_f32 v%d, v%d, v%d" % (a,a,a+1))
        e("  v_cvt_pk_bf16_f32 v%d, v%d, v%d" % (a+1,a+2,a+3))
        e("  buffer_store_dwordx2 v[%d:%d], v%d, s[8:11], s%d offen offset:%d" % (a,a+1,vT,so,32*h))
e("L_fin:")
if DIAG:
    e("  s_waitcnt vmcnt(0)")
    ts(3)
    e("  s_lshl_b32 s3, s2, 12"); e("  s_add_u32 s3, s3, %d" % (250<<20))
    e("  v_lshlrev_b32 v0, 2, v0")
    e("  buffer_store_dword v%d, v0, s[4:7], s3 offen" % vTS)
e("L_end:")
e("  s_endpgm")
if PRE: gen_pre.emit(e,BD)
e('.section .rodata,"a"')
def desc(k,nv):
    e('.p2align 6')
    e('.amdhsa_kernel %s' % k)
    e('  .amdhsa_next_free_vgpr %d' % nv)
    e('  .amdhsa_next_free_sgpr 80')
    e('  .amdhsa_accum_offset %d' % nv)
    e('  .amdhsa_group_segment_fixed_size 0')
    e('  .amdhsa_kernarg_size 48')
    e('  .amdhsa_user_sgpr_count 2')
    e('  .amdhsa_user_sgpr_kernarg_segment_ptr 1')
    e('  .amdhsa_system_sgpr_workgroup_id_x 1')
    e('.end_amdhsa_kernel')
desc(NAME+'_kernel',NV)
if PRE: desc('pre_kernel',gen_pre.NV)
out = sys.argv[1] if len(sys.argv) > 1 else 'cdna_kernels/%s.s' % NAME
open(out,'w').write('\n'.join(o)+'\n')
```

```python
import os
GRID=1024; LDS=16384; NV=96
RS=int(os.environ.get("RS","1280")); NS=13; TILE=RS*64; PLANE=RS*32
BLKS=1024*13*768; BOFF=224<<20; HOFF=240<<20
MSKB=512; TBL=2048; INFO=2560; SORT=2816
PX=os.environ.get("PX","")
SM=os.environ.get("SM",""); SB=os.environ.get("SB",""); KK=[0]; HS=int(os.environ.get("HS","0")); BM=int(os.environ.get("BM","0")); BS=int(os.environ.get("BS","0")); SH=int(os.environ.get("SH","0")); BF=int(os.environ.get("BF","0"))
def emit(e0,BD):
    def e(l):
        if 'b' in PX and ('s[20:23]' in l or 'buffer_store_dwordx4' in l):
            if 'load' in l: e0("  buffer_load_dword v%d, v%d, s[12:15], 0 offen" % (52,1))
            return
        if 's' in PX and 'buffer_store_dwordx3' in l: return
        if 'buffer_store_dwordx3' in l and SM: l+=' '+SM
        if 'buffer_store_dwordx4' in l and SB: l+=' '+SB
        if BF==2 and l.startswith("  s_waitcnt vmcnt(") and KK[0]: return
        e0(l)
        if 'c' in PX and l=="P_a3:": e0("  s_waitcnt vmcnt(0) lgkmcnt(0)"); e0("  s_endpgm")
    PD=int(os.environ.get("PD","0")); BF=int(os.environ.get("BF","0"))
    def ts(n):
        if PD: e("  s_memrealtime s[%d:%d]" % (62+2*n,63+2*n))
    assert RS%16==0
    vI=8; vV=20; vA=26; vR=38; vB=52; vL=1; vT=2; vU=3; vTm=4; vF=5; vZ=6
    K=823422; K2=(1<<32)//RS+1
    for c in range(16384+256): assert (c*K2)>>32==c//RS
    for s in range(3072): assert (s*K)>>27==s//163
    G=RS//16; KG=(1<<20)//G+1
    for g in range(1024+16): assert (g*KG)>>20==g//G
    sW=3
    e('.globl pre_kernel'); e('.p2align 8'); e('.type pre_kernel,@function'); e('pre_kernel:')
    e("  s_cmp_ge_u32 s2, 1024"); e("  s_cbranch_scc1 P_end")
    ts(0)
    e("  s_load_dwordx4 s[4:7], s[0:1], 0")
    e("  s_load_dwordx2 s[8:9], s[0:1], 16")
    e("  s_load_dwordx2 s[10:11], s[0:1], 40")
    e("  v_lshrrev_b32 v%d, 6, v0" % vT)
    e("  v_and_b32 v%d, 63, v0" % vL)
    e("  v_readfirstlane_b32 s%d, v%d" % (sW,vT))
    e("  v_mov_b32 v%d, 0" % vZ); e("  v_mov_b32 v%d, 0" % (vZ+1))
    e("  v_lshlrev_b32 v%d, 3, v0" % vU)
    e("  ds_write_b64 v%d, v[%d:%d]" % (vU,vZ,vZ+1))
    e("  v_lshlrev_b32 v%d, 4, v0" % vT)
    e("  s_mul_i32 s28, s2, 10432"); e("  s_mul_i32 s29, s2, 5216")
    e("  s_add_u32 s30, s28, 4096"); e("  s_add_u32 s31, s28, 8192")
    e("  s_add_u32 s56, s29, 4096")
    e("  v_cmp_gt_u32 vcc, 140, v0")
    e("  v_bfrev_b32 v%d, 1" % vF)
    e("  s_nop 0")
    e("  v_cndmask_b32 v%d, v%d, v%d, vcc" % (vTm,vF,vU))
    e("  v_cndmask_b32 v%d, v%d, v%d, vcc" % (vF,vF,vT))
    e("  s_waitcnt lgkmcnt(0)")
    for b,lo,n in ((12,4,16384*326),(16,6,16384*652),(20,8,1<<23),(24,10,1<<28)):
        e("  s_mov_b32 s%d, s%d" % (b,lo)); e("  s_mov_b32 s%d, s%d" % (b+1,lo+1))
        e("  s_mov_b32 s%d, %d" % (b+2,n)); e("  s_mov_b32 s%d, 0x20000" % (b+3))
    if BF==3:
        e("  v_lshrrev_b32 v62, 3, v%d" % vL); e("  v_and_b32 v60, 7, v%d" % vL); e("  v_lshlrev_b32 v60, 4, v60"); e("  v_lshl_add_u32 v60, v62, 9, v60")
        e("  s_lshl_b32 s58, s2, 13"); e("  s_lshl_b32 s59, s%d, 7" % sW); e("  s_add_u32 s58, s58, s59"); e("  s_add_u32 s59, s58, 4096")
        e("  buffer_load_dwordx4 v[88:91], v60, s[20:23], s58 offen")
        e("  buffer_load_dwordx4 v[92:95], v60, s[20:23], s59 offen")
    e("  buffer_load_dwordx2 v[%d:%d], v%d, s[12:15], s29 offen" % (vV,vV+1,vU))
    e("  buffer_load_dwordx4 v[%d:%d], v%d, s[16:19], s28 offen" % (vI,vI+3,vT))
    e("  buffer_load_dwordx2 v[%d:%d], v%d, s[12:15], s29 offen offset:2048" % (vV+2,vV+3,vU))
    e("  buffer_load_dwordx4 v[%d:%d], v%d, s[16:19], s30 offen" % (vI+4,vI+7,vT))
    e("  buffer_load_dwordx2 v[%d:%d], v%d, s[12:15], s56 offen" % (vV+4,vV+5,vTm))
    e("  buffer_load_dwordx4 v[%d:%d], v%d, s[16:19], s31 offen" % (vI+8,vI+11,vF))
    vS=60; vD=61
    e("  v_lshrrev_b32 v%d, 3, v%d" % (vT,vL))
    e("  v_and_b32 v%d, 7, v%d" % (vU,vL))
    e("  v_lshlrev_b32 v%d, 4, v%d" % (vS,vU))
    e("  v_lshl_add_u32 v%d, v%d, 9, v%d" % (vS,vT,vS))
    e("  s_lshl_b32 s28, s2, 13"); e("  s_lshl_b32 s29, s%d, 7" % sW); e("  s_add_u32 s28, s28, s29"); e("  s_add_u32 s29, s28, 4096")
    if BF:
        vB=88; vD=87
        e("  s_mov_b32 s61, s28")
    else:
        e("  buffer_load_dwordx4 v[%d:%d], v%d, s[20:23], s28 offen" % (vB,vB+3,vS))
        e("  buffer_load_dwordx4 v[%d:%d], v%d, s[20:23], s29 offen" % (vB+4,vB+7,vS))
    nb=0 if BF else 2
    if BM:
        e("  v_bfe_u32 v%d, v%d, 1, 4" % (vT,vL)); e("  v_lshlrev_b32 v%d, 9, v%d" % (vS,vT))
        e("  v_lshrrev_b32 v%d, 5, v%d" % (vT,vL)); e("  v_lshl_add_u32 v%d, v%d, 5, v%d" % (vS,vT,vS))
        e("  v_and_b32 v%d, 1, v%d" % (vU,vL)); e("  v_lshl_add_u32 v%d, v%d, 4, v%d" % (vS,vU,vS))
    def bld():
        e("  s_add_u32 s29, s61, %d" % (64 if BM else 4096))
        e("  buffer_load_dwordx4 v[%d:%d], v%d, s[20:23], s61 offen" % (vB,vB+3,vS))
        e("  buffer_load_dwordx4 v[%d:%d], v%d, s[20:23], s29 offen" % (vB+4,vB+7,vS))
    def bst(n=0):
        e("  s_waitcnt vmcnt(%d)" % n)
        e("  buffer_store_dwordx4 v[%d:%d], v%d, s[24:27], s57 offen" % (vB,vB+3,vD))
        if BM:
            e("  s_add_u32 s57, s57, %d" % (13*TILE))
            e("  buffer_store_dwordx4 v[%d:%d], v%d, s[24:27], s57 offen" % (vB+4,vB+7,vD))
        else: e("  buffer_store_dwordx4 v[%d:%d], v%d, s[24:27], s57 offen offset:256" % (vB+4,vB+7,vD))
    e("  v_lshlrev_b32 v%d, 5, v%d" % (vD,vT))
    e("  v_and_b32 v%d, 1, v%d" % (vT,vL)); e("  v_lshl_add_u32 v%d, v%d, 4, v%d" % (vD,vT,vD))
    e("  s_mov_b32 s28, %d" % PLANE); e("  s_mov_b32 s29, %d" % (13*TILE))
    e("  v_bfe_u32 v%d, v%d, 1, 1" % (vT,vL)); e("  v_mad_u32_u24 v%d, v%d, s28, v%d" % (vD,vT,vD))
    e("  v_bfe_u32 v%d, v%d, 2, 1" % (vT,vL)); e("  v_mad_u32_u24 v%d, v%d, s29, v%d" % (vD,vT,vD))
    if BM:
        e("  v_and_b32 v%d, 31, v%d" % (vD,vL)); e("  v_lshlrev_b32 v%d, 4, v%d" % (vD,vD))
        e("  v_lshrrev_b32 v%d, 5, v%d" % (vT,vL)); e("  v_mad_u32_u24 v%d, v%d, s28, v%d" % (vD,vT,vD))
    e("  s_add_u32 s29, s2, %d" % (16 if SH else 0))
    e("  s_mul_i32 s28, s29, %d" % KG); e("  s_lshr_b32 s28, s28, 20")
    e("  s_mul_i32 s28, s28, %d" % (TILE-G*512)); e("  s_lshl_b32 s29, s29, 9"); e("  s_add_u32 s28, s28, s29")
    e("  s_mul_i32 s29, s%d, %d" % (sW,26*TILE)); e("  s_add_u32 s28, s28, s29"); e("  s_add_u32 s57, s28, %d" % BOFF)
    e("  v_mul_u32_u24 v%d, %d, v0" % (vTm,4*K))
    e("  v_mov_b32 v%d, 4" % vF)
    e("  s_mov_b32 s28, %d" % ((-RS)&0xffffffff))
    e("  s_mov_b32 s30, 0x05040100"); e("  s_mov_b32 s31, 0x07060100")
    e("  s_barrier")
    if BF==3: bst(6)
    def mk(k,i): return 32+2*(4*k+i)
    for k in range(3):
        KK[0]=(k==2)
        if k==2: e("  s_cmp_eq_u32 s%d, 3" % sW); e("  s_cbranch_scc1 P_a3")
        e("  s_waitcnt vmcnt(%d)" % (5+nb-2*k))
        for i in range(4):
            e("  v_cmp_neq_f16_sdwa s[%d:%d], v%d, v%d src0_sel:WORD_%d src1_sel:DWORD" % (mk(k,i),mk(k,i)+1,vV+2*k+(i>>1),vZ,i&1))
        e("  s_waitcnt vmcnt(%d)" % (4+nb-2*k))
        if BF==2 and k==1: e("  s_waitcnt vmcnt(0)"); bld()
        if k==0: ts(1)
        for i in range(4):
            c=vI+4*k+i; a=vA+4*k+i
            e("  s_mov_b64 exec, s[%d:%d]" % (mk(k,i),mk(k,i)+1))
            if SH: e("  v_add_u32 v%d, 256, v%d" % (c,c))
            e("  v_mul_hi_u32_u24 v%d, %d, v%d" % (vT,K2,c))
            e("  v_lshlrev_b32 v%d, 29, v%d" % (vU,c))
            e("  v_alignbit_b32 v%d, v%d, v%d, 27" % (a,vT,vU))
            e("  ds_add_rtn_u32 v%d, v%d, v%d" % (vR+4*k+i,a,vF))
            e("  v_mad_i32_i24 v%d, v%d, s28, v%d" % (c,vT,c))
            e("  v_add_u32 v%d, %d, v%d" % (vU,(1024*k+i)*K,vTm))
            e("  v_alignbit_b32 v%d, v%d, v%d, 27" % (c,c,vU))
            e("  v_perm_b32 v%d, v%d, v%d, s%d" % (c,vV+2*k+(i>>1),c,30+(i&1)))
        e("  s_mov_b64 exec, -1")
    KK[0]=0
    e("P_a3:")
    ts(2)
    if BF==1: bld()
    if not BF: bst()
    e("  s_cmp_lg_u32 s%d, 0" % sW)
    e("  s_waitcnt lgkmcnt(0)")
    e("  s_barrier")
    ts(3)
    e("  s_cbranch_scc1 P_np")
    c0,c1,x,y,tot,cap=62,63,64,65,66,67; q4=68
    dp="row_mask:0xf bank_mask:0xf"
    e("  v_lshlrev_b32 v%d, 3, v%d" % (vT,vL))
    e("  ds_read_b64 v[%d:%d], v%d" % (c0,c1,vT))
    e("  s_mov_b32 s58, 0x88888888"); e("  s_mov_b32 s59, s58")
    e("  s_waitcnt lgkmcnt(0)")
    e("  v_add_u32 v%d, v%d, v%d" % (x,c0,c1)); e("  s_nop 1")
    e("  v_add_u32_dpp v%d, v%d, v%d quad_perm:[1,0,3,2] %s" % (y,x,x,dp)); e("  s_nop 1")
    e("  v_add_u32_dpp v%d, v%d, v%d quad_perm:[2,3,0,1] %s" % (tot,y,y,dp))
    e("  v_add_u32 v%d, %d, v%d" % (cap,63 if HS else 127,tot)); e("  v_and_b32 v%d, %s, v%d" % (cap,"0xffffffc0" if HS else "0xffffff80",cap))
    e("  v_sub_u32 v%d, v%d, v%d" % (y,cap,tot))
    e("  v_cndmask_b32 v%d, 0, v%d, s[58:59]" % (y,y))
    e("  v_add_u32 v%d, v%d, v%d" % (x,x,y))
    e("  v_mov_b32 v%d, v%d" % (y,x))
    for sh in (1,2,4,8):
        e("  s_nop 1"); e("  v_add_u32_dpp v%d, v%d, v%d row_shr:%d %s" % (y,y,y,sh,dp))
    e("  s_nop 1"); e("  v_add_u32_dpp v%d, v%d, v%d row_bcast:15 row_mask:0xa bank_mask:0xf" % (y,y,y))
    e("  s_nop 1"); e("  v_add_u32_dpp v%d, v%d, v%d row_bcast:31 row_mask:0xc bank_mask:0xf" % (y,y,y))
    e("  v_sub_u32 v%d, v%d, v%d" % (y,y,x))
    e("  v_add_u32 v%d, %d, v%d" % (x,SORT,y))
    e("  v_add_u32 v%d, v%d, v%d" % (y,x,c0))
    e("  ds_write_b64 v%d, v[%d:%d] offset:%d" % (vT,x,y,TBL))
    e("  v_add_u32 v%d, v%d, v%d" % (q4,x,tot))
    e("  v_mov_b32 v%d, v%d" % (q4+1,x))
    e("  v_lshrrev_b32 v%d, 3, v%d" % (q4+2,cap))
    e("  v_lshrrev_b32 v%d, %d, v%d" % (cap,6 if HS else 7,cap))
    e("  v_cvt_f32_u32 v%d, v%d" % (y,cap)); e("  v_rcp_f32 v%d, v%d" % (y,y))
    e("  v_mov_b32 v%d, 0x43800000" % tot)
    e("  v_fma_f32 v%d, v%d, v%d, 0.5" % (y,y,tot))
    e("  v_cvt_u32_f32 v%d, v%d" % (y,y))
    e("  v_add_u32 v%d, 1, v%d" % (q4+3,y))
    e("  v_lshlrev_b32 v%d, 2, v%d" % (vT,vL))
    e("  s_lshl_b32 s29, s2, 6"); e("  s_add_u32 s29, s29, %d" % HOFF)
    e("  s_mov_b32 exec_lo, 0x11111111"); e("  s_mov_b32 exec_hi, 0x11111111")
    e("  ds_write_b128 v%d, v[%d:%d] offset:%d" % (vT,q4,q4+3,INFO))
    e("  buffer_store_dword v%d, v%d, s[24:27], s29 offen" % (cap,vL))
    e("  s_mov_b64 exec, -1")
    e("  s_waitcnt lgkmcnt(0)")
    e("P_np:")
    pos1,C1,pos2,C2,b0,b1,vMB,vMr,vL12,d4,dd,vIA=70,71,72,73,74,75,76,77,78,79,80,81
    t1,t2,t3=82,83,84
    e("  v_bfe_u32 v%d, v%d, 4, 1" % (t1,vL))
    e("  v_bfe_u32 v%d, v%d, 2, 2" % (t2,vL))
    e("  v_and_b32 v%d, 3, v%d" % (t3,vL))
    e("  v_lshl_add_u32 v%d, v%d, 2, v%d" % (pos1,t1,t2))
    e("  v_and_b32 v%d, 1, v%d" % (pos2,vL)); e("  v_lshlrev_b32 v%d, 1, v%d" % (pos2,pos2))
    e("  v_lshl_add_u32 v%d, v%d, 2, v%d" % (pos2,t1,pos2))
    e("  v_lshrrev_b32 v%d, 5, v%d" % (t1,vL))
    e("  v_lshlrev_b32 v%d, 3, v%d" % (C1,t1))
    e("  v_lshl_add_u32 v%d, v%d, 4, v%d" % (C2,t2,C1))
    e("  v_lshl_add_u32 v%d, v%d, 4, v%d" % (C1,t3,C1))
    e("  v_bfe_u32 v%d, v%d, 1, 1" % (b0,vL)); e("  v_lshl_add_u32 v%d, v%d, 2, v%d" % (C2,b0,C2))
    e("  v_lshlrev_b32 v%d, 6, v%d" % (vIA,t1))
    e("  s_lshl_b32 s29, s%d, 4" % sW); e("  v_add_u32 v%d, s29, v%d" % (vIA,vIA))
    e("  v_bfe_u32 v%d, v%d, 2, 1" % (b0,vL)); e("  v_lshl_add_u32 v%d, v%d, 4, 15" % (b0,b0))
    e("  v_and_b32 v%d, 8, v%d" % (b1,vL)); e("  v_sub_u32 v%d, v%d, v%d" % (b0,b0,b1))
    e("  v_lshlrev_b32 v%d, 1, v%d" % (t3,t3)); e("  v_sub_u32 v%d, v%d, v%d" % (b0,b0,t3))
    e("  v_lshlrev_b32 v%d, v%d, 1" % (b0,b0)); e("  v_lshrrev_b32 v%d, 1, v%d" % (b1,b0))
    e("  s_lshl_b32 s29, s%d, 8" % sW); e("  s_add_u32 s29, s29, %d" % MSKB)
    e("  v_lshl_add_u32 v%d, v%d, 2, s29" % (vMr,vL))
    e("  v_and_b32 v%d, 0xffffffc0, v%d" % (vMB,vMr))
    e("  v_mul_u32_u24 v%d, 12, v%d" % (vL12,vL))
    e("  v_bfe_u32 v%d, v%d, %s" % (d4,vL,"1, 3" if HS else "2, 3"))
    XA,XV,C1h,C2h=85,86,68,69
    if HS:
        e("  v_and_b32 v%d, 3, v%d" % (XA,vL)); e("  v_lshlrev_b32 v%d, 4, v%d" % (XA,XA))
        e("  v_and_b32 v%d, 12, v%d" % (XV,vL)); e("  v_lshlrev_b32 v%d, 2, v%d" % (XV,XV))
        e("  v_lshl_add_u32 v%d, v%d, 2, v%d" % (C1h,t1,XA)); e("  v_lshl_add_u32 v%d, v%d, 2, v%d" % (C2h,t1,XV))
    e("  v_and_b32 v%d, 31, v%d" % (dd,vL)); e("  v_lshlrev_b32 v%d, 2, v%d" % (dd,dd))
    e("  s_barrier")
    ts(4)
    vTb=52
    def pr(n):
        e("  s_mov_b64 exec, s[%d:%d]" % (32+2*n,33+2*n))
        e("  ds_read_b32 v%d, v%d offset:%d" % (vTb+n,vA+n,TBL))
    i0,i1=20,64
    e("  ds_read_b128 v[%d:%d], v%d offset:%d" % (i0,i0+3,vIA,INFO))
    e("  ds_read_b128 v[%d:%d], v%d offset:%d" % (i1,i1+3,vIA,INFO+128))
    for n in range(8): pr(n)
    e("  s_cmp_eq_u32 s%d, 3" % sW); e("  s_cbranch_scc1 P_b3")
    for n in range(8,12): pr(n)
    e("  s_waitcnt lgkmcnt(0)")
    def pb(n):
        e("  s_mov_b64 exec, s[%d:%d]" % (32+2*n,33+2*n))
        e("  v_add_u32 v%d, v%d, v%d" % (vTb+n,vTb+n,vR+n))
        e("  ds_write_b32 v%d, v%d" % (vTb+n,vI+n))
    for n in range(8,12): pb(n)
    e("P_b3:")
    e("  s_waitcnt lgkmcnt(4)" if False else "  s_waitcnt lgkmcnt(0)")
    for n in range(8): pb(n)
    e("  s_mov_b64 exec, -1")
    e("  s_mov_b32 s28, 256")
    if BS==1: bst()
    for r,ii in enumerate((i0,i1)):
        A,off,S4,M=ii,ii+1,ii+2,ii+3; t=16+r
        e("  v_mad_u32_u24 v%d, v%d, v%d, s28" % (M,d4,M))
        e("  v_lshrrev_b32 v%d, 8, v%d" % (M,M))
        e("  v_add_u32 v%d, v%d, v%d" % (A,A,dd))
        e("  v_mul_u32_u24 v%d, v%d, v%d" % (M,M,S4))
        e("  v_sub_u32 v%d, v%d, v%d" % (M,A,M))
        e("  v_max_i32 v%d, v%d, v%d" % (M,M,off))
        e("  v_lshl_add_u32 v%d, v%d, 3, v%d" % (t,S4,off))
        e("  v_cmp_lt_u32 s[%d:%d], v%d, v%d" % (32+2*r,33+2*r,A,t))
    for j in range(4):
        ii=(i0,i1)[j>>1]
        e("  v_readlane_b32 s%d, v%d, %d" % (40+j,ii+1,32*(j&1)))
        e("  v_readlane_b32 s%d, v%d, %d" % (44+j,ii+2,32*(j&1)))
    e("  s_mul_i32 s48, s2, %d" % (13*768)); e("  s_mul_i32 s29, s%d, 768" % sW); e("  s_add_u32 s48, s48, s29")
    e("  s_mov_b32 s60, 0xffe0ffe0")
    e("  s_waitcnt lgkmcnt(0)")
    e("  s_barrier")
    ts(5)
    for r,ii in enumerate((i0,i1)): e("  ds_read_u16 v%d, v%d" % (16+r,ii+3))
    aj=[(4+3*j,5+3*j,6+3*j) if j else (26,27,28) for j in range(4)]
    aj[1]=(29,30,31); aj[2]=(8,9,10); aj[3]=(11,12,13)
    def adr(j,rem):
        a1,a2,a3=aj[j]; c1,c2=C1,C2
        if HS:
            e("  s_and_b32 s29, s%d, -16" % rem)
            e("  v_cmp_eq_u32 vcc, s29, v%d" % XA); e("  v_cmp_eq_u32 s[58:59], s29, v%d" % XV)
            e("  s_nop 0")
            e("  v_cndmask_b32 v%d, v%d, v%d, vcc" % (a1,C1,C1h)); e("  v_cndmask_b32 v%d, v%d, v%d, s[58:59]" % (a2,C2,C2h))
            c1,c2=a1,a2
        e("  v_mad_u32_u24 v%d, v%d, s%d, v%d" % (a1,pos1,44+j,c1))
        e("  v_mad_u32_u24 v%d, v%d, s%d, v%d" % (a2,pos2,44+j,c2))
        e("  v_add_u32 v%d, s%d, v%d" % (a1,40+j,a1))
        e("  v_add_u32 v%d, s%d, v%d" % (a2,40+j,a2))
        e("  v_add_u32 v%d, s%d, v%d" % (a3,44+j,a2))
    for j in range(4): adr(j,44+j)
    e("  s_waitcnt lgkmcnt(0)")
    for r,ii in enumerate((i0,i1)):
        e("  s_mov_b64 exec, s[%d:%d]" % (32+2*r,33+2*r))
        e("  ds_write_b32 v%d, v%d" % (ii,16+r))
    e("  s_mov_b64 exec, -1")
    def rd(j):
        a1,a2,a3=aj[j]; E=32+2*j; O=40+4*j
        e("  ds_read2_b32 v[%d:%d], v%d offset1:1" % (E,E+1,a1))
        e("  ds_read_u16 v%d, v%d offset:2" % (O+1,a2))
        e("  ds_read_b32 v%d, v%d" % (O+3,a3))
    def cp(j):
        E=32+2*j; O=40+4*j
        e("  v_and_b32 v%d, 15, v%d" % (t1,E)); e("  v_and_b32 v%d, 15, v%d" % (t2,E+1))
        e("  v_lshl_add_u32 v%d, v%d, 2, v%d" % (t1,t1,vMB)); e("  v_lshl_add_u32 v%d, v%d, 2, v%d" % (t2,t2,vMB))
        e("  ds_or_b32 v%d, v%d" % (t1,b0)); e("  ds_or_b32 v%d, v%d" % (t2,b1))
        e("  ds_wrxchg_rtn_b32 v%d, v%d, v%d" % (O+2,vMr,vZ))
        e("  v_perm_b32 v%d, v%d, v%d, s30" % (O,E+1,E))
        e("  v_perm_b32 v%d, v%d, v%d, s31" % (O+1,O+3,O+1))
        e("  v_and_b32 v%d, s60, v%d" % (O,O))
    def st(j,so): e("  buffer_store_dwordx3 v[%d:%d], v%d, s[24:27], s%d offen" % (40+4*j,42+4*j,vL12,so))
    for j in range(4): rd(j)
    if BF in (1,2) and not BS: bst()
    for j in range(3):
        e("  s_waitcnt lgkmcnt(9)")
        cp(j)
    for j in range(1,4): e("  s_add_u32 s%d, s48, %d" % (48+j,j*4*768))
    e("  s_cmp_lg_u32 s%d, 0" % sW)
    e("  s_cbranch_scc1 P_c3")
    e("  s_waitcnt lgkmcnt(9)")
    cp(3)
    e("  s_waitcnt lgkmcnt(0)")
    st(3,51)
    e("P_c3:")
    e("  s_waitcnt lgkmcnt(0)")
    for j in range(3): st(j,48+j)
    if PD:
        ts(6); e("  s_waitcnt vmcnt(0)"); ts(7); e("  s_waitcnt lgkmcnt(0)")
        for n in range(8): e("  v_writelane_b32 v2, s%d, %d" % (62+2*n,n))
        e("  s_lshl_b32 s29, s2, 10"); e("  s_add_u32 s29, s29, %d" % (250<<20))
        e("  v_lshlrev_b32 v0, 2, v0"); e("  buffer_store_dword v2, v0, s[24:27], s29 offen")
    for j in range(4):
        a1,a2,a3=aj[j]
        if j==3: e("  s_cmp_lg_u32 s%d, 0" % sW); e("  s_cbranch_scc1 P_end")
        e("  s_min_u32 s28, s%d, %d" % (44+j,84*16))
        e("P_l%d:" % j)
        e("  s_cmp_le_u32 s28, 64"); e("  s_cbranch_scc1 P_d%d" % j)
        e("  s_sub_u32 s28, s28, 64")
        e("  s_add_u32 s%d, s%d, 64" % (40+j,40+j))
        adr(j,28)
        e("  s_add_u32 s%d, s%d, %d" % (48+j,48+j,BLKS))
        e("  s_waitcnt vmcnt(0)")
        rd(j); e("  s_waitcnt lgkmcnt(0)"); cp(j); e("  s_waitcnt lgkmcnt(0)"); st(j,48+j)
        e("  s_branch P_l%d" % j)
        e("P_d%d:" % j)
    e("P_end:")
    e("  s_endpgm")
```

```python
import sys, os
NAME = "standalone__sparse_matmul_formats_ell__sparse_mat"
BD   = int(os.environ.get("BD","0"))
PRE  = int(os.environ.get("PRE","0"))
ASHR = os.environ.get("ASHR","pk")
NOMM = int(os.environ.get("NOMM","0"))
NODMA= int(os.environ.get("NODMA","0"))
NOSTR=int(os.environ.get("NOSTR","0"))
NOBAR=int(os.environ.get("NOBAR","0"))
NORD=int(os.environ.get("NORD","0"))
DIAG=int(os.environ.get('DIAG','0'))
def ts(lane):
    if not DIAG: return
    e('  s_memrealtime s[40:41]'); e('  s_waitcnt lgkmcnt(0)')
    if isinstance(lane,int): e('  v_writelane_b32 v%d, s40, %d' % (vTS,lane))
    else:
        e('  s_mov_b32 s42, m0'); e('  s_add_u32 m0, %s' % lane); e('  s_nop 0'); e('  v_writelane_b32 v%d, s40, m0' % vTS); e('  s_mov_b32 m0, s42')
HS=int(os.environ.get('HS','0')); FB=8 if HS else 4
NS=13; RS=1280; TILE=81920; PLANE=40960
BLKS=1024*13*768; BOFF=224<<20; HOFF=240<<20
o=[]
def e(s): o.append(s)
HDR = open('cdna_kernels/%s.s.ref' % NAME).read().split('\n')
for l in HDR[:8]:
    if l.startswith('; Override') or l.startswith('; @launch'): break
    e(l)
if PRE:
    import gen_pre
    e("; @launch kernel=pre_kernel grid=(%d,1,1) block=(256,1,1) lds=%d" % (gen_pre.GRID, gen_pre.LDS))
    e("; @launch kernel=%s_kernel grid=(256,1,1) block=(1024,1,1) lds=163840" % NAME)
else:
    e("; @launch grid=(256,1,1) block=(1024,1,1) lds=163840")
e('.amdgcn_target "amdgcn-amd-amdhsa--gfx950"')
e('.text')
e('.globl %s_kernel' % NAME)
e('.p2align 8')
e('.type %s_kernel,@function' % NAME)
e('%s_kernel:' % NAME)
GR='abc'
PRIO=int(os.environ.get('PRIO','1'))
ACC={'a':4,'b':12,'c':20}
CUR={'a':(28,52),'b':(32,56),'c':(36,60)}
NXT={'a':(40,64),'b':(44,68),'c':(48,72)}
vLB,vSO,vCNT,vL,vT,vDO=55,59,63,67,71,75
vA=(76,80); vB=84; vAD=76; vS=116; vK4=120; vQ=120; vM0=2
vTS=1
NV=124
sP,sSO,sDO,sM,sBk,sT,sT2,sCS,sRG,sW=16,17,18,19,24,25,26,27,28,29
sN={'a':20,'b':21,'c':22}; sNN={'a':44,'b':45,'c':46}
GOFF={'a':0,'b':12*13*768,'c':24*13*768}
e("  s_cmp_ge_u32 s2, 256")
e("  s_cbranch_scc1 L_end")
ts(0)
e("  s_load_dwordx2 s[34:35], s[0:1], 24")
e("  s_load_dwordx2 s[36:37], s[0:1], 40")
e("  v_lshrrev_b32 v%d, 6, v0" % vT)
e("  v_and_b32 v%d, 63, v0" % vL)
e("  v_readfirstlane_b32 s%d, v%d" % (sW,vT))
e("  s_and_b32 s%d, s2, 3" % sCS)
e("  s_lshl_b32 s%d, s%d, 1" % (sCS,sCS))
e("  s_bfe_u32 s3, s2, 0x10003")
e("  s_add_u32 s%d, s%d, s3" % (sCS,sCS))
e("  s_bfe_u32 s%d, s2, 0x10002" % sRG)
e("  s_lshl_b32 s%d, s%d, 4" % (sRG,sRG))
e("  s_lshr_b32 s3, s2, 4")
e("  s_add_u32 s%d, s%d, s3" % (sRG,sRG))
e("  s_lshl_b32 s%d, s%d, 5" % (sRG,sRG))
e("  s_add_u32 s%d, s%d, s%d" % (sRG,sRG,sW))
e("  s_mul_i32 s%d, s%d, %d" % (sSO,sRG,13*768))
e("  s_lshl_b32 s%d, s%d, 6" % (sT2,sRG))
e("  s_add_u32 s%d, s%d, %d" % (sT2,sT2,HOFF))
e("  v_lshrrev_b32 v%d, 4, v%d" % (vT,vL))
e("  v_mul_u32_u24 v%d, %d, v%d" % (vT,12*64-64,vT))
e("  v_lshl_add_u32 v%d, v%d, 2, v%d" % (vT,vL,vT))
e("  v_mul_u32_u24 v%d, 12, v%d" % (vSO,vL))
e("  v_and_b32 v%d, 3, v%d" % (vLB,vL))
e("  v_lshlrev_b32 v%d, 3, v%d" % (vLB,vLB))
SH=int(os.environ.get("SH","0")); SO=os.environ.get("SO","")
if SH:
    e("  s_lshr_b32 s3, s%d, 3" % sW); e("  s_mul_i32 s3, s3, %d" % (PLANE-8*4096)); e("  s_lshl_b32 s%d, s%d, 12" % (sM,sW))
    e("  s_add_u32 s%d, s%d, s3" % (sM,sM)); e("  s_add_u32 s%d, s%d, 8192" % (sM,sM))
else: e("  s_mul_i32 s%d, s%d, 5120" % (sM,sW))
e("  v_lshlrev_b32 v%d, 4, v%d" % (vDO,vL))
e("  s_mul_i32 s%d, s%d, %d" % (sDO,sCS,13*TILE))
e("  s_add_u32 s%d, s%d, %d" % (sDO,sDO,BOFF))
e("  s_add_u32 s3, s%d, s%d" % (sDO,sM))
e("  s_waitcnt lgkmcnt(0)")
e("  s_mov_b32 s4, s36"); e("  s_mov_b32 s5, s37"); e("  s_mov_b32 s6, 0x10000000"); e("  s_mov_b32 s7, 0x20000")
e("  s_mov_b32 s8, s34"); e("  s_mov_b32 s9, s35"); e("  s_mov_b32 s10, 0x800000"); e("  s_mov_b32 s11, 0x20000")
ts(1)
e("  s_mov_b32 m0, s%d" % sM)
e("  s_add_u32 s%d, s3, 4096" % sT)
for i in range(4): e("  buffer_load_dwordx4 v%d, s[4:7], s3 offen offset:%d lds" % (vDO,i*1024))
e("  s_add_u32 m0, s%d, 4096" % sM)
e("  s_cmp_lt_u32 s%d, 12" % sW)
if not SH: e("  buffer_load_dwordx4 v%d, s[4:7], s%d offen lds" % (vDO,sT))
e("  s_cbranch_scc1 L_comp")
e("  s_sub_u32 s%d, s%d, 12" % (sW,sW))
e("  s_mul_i32 s%d, s%d, 20480" % (sM,sW))
e("  s_add_u32 s%d, s%d, s%d" % (sDO,sDO,sM))
e("  s_add_u32 s30, s%d, %d" % (sM,TILE))
e("  s_xor_b32 s30, s30, s%d" % sM)
RST=int(os.environ.get("RST","0")); LPR=int(os.environ.get("LPR","3")); AO=int(os.environ.get("AO","0"))
if RST:
  vR=4
  def lds_():
    e("  s_add_u32 s%d, s%d, %d" % (sDO,sDO,TILE))
    for k in range(5):
      e("  s_add_u32 s%d, s%d, %d" % (sT,sDO,k*4096))
      for i in range(4): e("  buffer_load_dwordx4 v[%d:%d], v%d, s[4:7], s%d offen offset:%d" % (vR+16*k+4*i,vR+16*k+4*i+3,vDO2,sT,i*1024))
  vDO2=88; vWA=89
  e("  s_setprio %d" % LPR)
  e("  v_mov_b32 v%d, v%d" % (vDO2,vDO))
  e("  v_add_u32 v%d, s%d, v%d" % (vWA,sM,vDO))
  lds_()
  e("  s_mov_b32 s%d, 1" % sP)
  e("  s_waitcnt vmcnt(20)")
  e("  s_barrier")
  e("L_load:")
  e("  v_xor_b32 v%d, s30, v%d" % (vWA,vWA))
  for n in range(20):
    e("  s_waitcnt vmcnt(%d)" % (19-n))
    if not NODMA: e("  ds_write_b128 v%d, v[%d:%d] offset:%d" % (vWA,vR+4*n,vR+4*n+3,n*1024))
  e("  s_add_u32 s%d, s%d, 1" % (sP,sP))
  e("  s_cmp_ge_u32 s%d, %d" % (sP,NS))
  e("  s_waitcnt lgkmcnt(0)")
  e("  s_cbranch_scc1 L_lend")
  lds_()
  e("  s_barrier")
  e("  s_branch L_load")
  e("L_lend:")
  e("  s_barrier")
  e("  s_branch L_fin")
else:
  e("  s_mov_b32 s%d, 1" % sP)
  e("  s_waitcnt vmcnt(0)")
  e("  s_barrier")
  e("L_load:")
  e("  s_xor_b32 s%d, s%d, s30" % (sM,sM))
  e("  s_add_u32 s%d, s%d, %d" % (sDO,sDO,TILE))
  if not NODMA:
    for k in range(5):
      e("  s_add_u32 m0, s%d, %d" % (sM,k*4096))
      e("  s_add_u32 s%d, s%d, %d" % (sT,sDO,k*4096))
      for i in range(4): e("  buffer_load_dwordx4 v%d, s[4:7], s%d offen offset:%d lds" % (vDO,sT,i*1024))
  e("  s_add_u32 s%d, s%d, 1" % (sP,sP))
  e("  s_cmp_lt_u32 s%d, %d" % (sP,NS))
  e("  s_waitcnt vmcnt(0)")
  ts("s16, 30")
  e("  s_barrier")
  e("  s_cbranch_scc1 L_load")
  e("  s_branch L_fin")
e("L_comp:")
if PRIO: e("  s_setprio %d" % PRIO)
e("  buffer_load_dword v%d, v%d, s[4:7], s%d offen" % (vCNT,vT,sT2))
def ld(r,so): e("  buffer_load_dwordx3 v[%d:%d], v%d, s[4:7], s%d offen" % (r,r+2,vSO,so))
def stream(tag, first):
    if NOSTR and not first:
        for X in GR: e("  s_mov_b32 s%d, %s" % (sNN[X], '4' if X!='c' else 's47'))
        return
    if not first:
        for k,X in enumerate(GR):
            if k: e("  s_add_u32 s%d, s%d, %d" % (sT,sP,16*k))
            e("  v_readlane_b32 s%d, v%d, s%d" % (sNN[X],vCNT,sT if k else sP))
    for X in GR:
        if X=='c':
            e("  s_cmp_ge_u32 s%d, 8" % sW); e("  s_cbranch_scc1 L_noc%s" % tag)
        e("  s_add_u32 s%d, s%d, %d" % (sT,sSO,GOFF[X]))
        ld(NXT[X][0],sT)
        if not first:
            e("  s_cmp_le_u32 s%d, 4" % sNN[X])
            e("  s_cbranch_scc1 L_ns%s%s" % (X,tag))
        e("  s_add_u32 s%d, s%d, %d" % (sT,sT,BLKS))
        ld(NXT[X][1],sT)
        e("L_ns%s%s:" % (X,tag))
    e("L_noc%s:" % tag)
    e("  s_add_u32 s%d, s%d, 768" % (sSO,sSO))
e("  s_mov_b32 s%d, 0" % sP)
stream('0',True)
for X in GR:
    for i in range(8): e("  v_mov_b32 v%d, 0" % (ACC[X]+i))
e("  s_cmp_ge_u32 s%d, 8" % sW)
e("  s_cselect_b32 s47, 0, 4")
e("  s_cselect_b32 s3, 32, 64")
e("  v_cmp_gt_u32 vcc, s3, v%d" % vL)
e("  s_waitcnt vmcnt(0)")
e("  s_nop 0")
e("  v_cndmask_b32 v%d, 0, v%d, vcc" % (vCNT,vCNT))
e("  v_min_u32 v%d, %d, v%d" % (vCNT,21*FB,vCNT))
e("  s_nop 1")
for k,X in enumerate(GR): e("  v_readlane_b32 s%d, v%d, %d" % (sNN[X],vCNT,16*k))
ts(2)
if not int(os.environ.get("EARLY","1")): e("  s_barrier")
def abuild(W,x,A,nh=2):
    ops=[]
    srcs=[]
    for ih in range(nh):
        p=2*x+ih; src=W+2
        if p: ops.append("  v_lshlrev_b64 v[%d:%d], %d, v[%d:%d]" % (vS+2*ih,vS+2*ih+1,p,W+2,W+3)); src=vS+2*ih
        srcs+= [src,src+1]
    for i in range(2*nh): ops.append("  v_pk_ashrrev_i16 v%d, 15, v%d op_sel_hi:[0,1]" % (vK4+i,srcs[i]))
    for i in range(2*nh): ops.append("  v_and_b32_dpp v%d, v%d, v%d row_newbcast:%d row_mask:0xf bank_mask:0xf" % (A+i,W+1,vK4+i,4*x+i))
    return [] if NOMM else ops
def block(W,acc,f,hf=0):
    n=f+hf
    nh=lambda x: 2 if x<f else 1
    if f: e("  v_lshrrev_b32 v%d, 16, v%d" % (vQ+1,W))
    e("  v_and_b32 v%d, 0xffff, v%d" % (vQ,W))
    e("  v_lshlrev_b32 v%d, 8, v%d" % (W+3,W+2))
    e("  s_nop 0")
    for x in range(n):
        a=vAD+2*x
        for h in range(nh(x)):
            e("  v_add_u32_dpp v%d, v%d, v%d quad_perm:[%d,%d,%d,%d] row_mask:0xf bank_mask:0xf" % (a+h,vQ+h,vLB,x,x,x,x))
        for q in ((0,1,2,3) if x<f else (0,2)): e("  ds_read_b64_tr_b16 v[%d:%d], v%d offset:%d" % (vB+8*x+2*q,vB+8*x+2*q+1,a+(q&1),PLANE*(q>>1)))
    for op in abuild(W,0,vA[0],nh(0)): e(op)
    for x in range(n):
        A=vA[x&1]
        nx = abuild(W,x+1,vA[(x+1)&1],nh(x+1)) if x+1<n else []
        c=(len(nx)+1)//2
        after=sum(2*nh(y) for y in range(x+1,n))
        for op in nx[:c]: e(op)
        e("  s_waitcnt lgkmcnt(%d)" % (after+nh(x)))
        if not nx: e("  s_nop 0")
        m="v_mfma_f32_16x16x32_bf16" if x<f else "v_mfma_f32_16x16x16_bf16"; r=2*nh(x)-1
        e("  %s v[%d:%d], v[%d:%d], v[%d:%d], v[%d:%d]" % (m,acc,acc+3,vB+8*x,vB+8*x+r,A,A+r,acc,acc+3))
        for op in nx[c:]: e(op)
        e("  s_waitcnt lgkmcnt(%d)" % after)
        e("  %s v[%d:%d], v[%d:%d], v[%d:%d], v[%d:%d]" % (m,acc+4,acc+7,vB+8*x+4,vB+8*x+4+r,A,A+r,acc+4,acc+7))
EARLY=int(os.environ.get("EARLY","1"))
def pre(t):
    global CUR,NXT
    CUR,NXT = NXT,CUR
    for X in GR: e("  s_mov_b32 s%d, s%d" % (sN[X],sNN[X]))
    e("  s_add_u32 s%d, s%d, 1" % (sP,sP))
    e("  s_mov_b32 s31, s%d" % sSO)
    e("  s_cmp_ge_u32 s%d, %d" % (sP,NS))
    e("  s_cbranch_scc1 L_nopf%s" % t)
    stream('1'+t,False)
    e("L_nopf%s:" % t)
def phase(par):
    t=str(par)
    e("L_phase%s:" % t)
    ts("s16, 48")
    if not EARLY: pre(t)
    for X in GR:
        sn=sN[X]; L=X+t; W=CUR[X][0]; acc=ACC[X]
        e("  s_mov_b32 s%d, 0" % sBk)
        e("L_blk%s:" % L)
        e("  s_cmp_ge_u32 s%d, 4" % sn); e("  s_cbranch_scc1 L_v4%s" % L)
        e("  s_cmp_eq_u32 s%d, 3" % sn); e("  s_cbranch_scc1 L_v3%s" % L)
        e("  s_cmp_eq_u32 s%d, 2" % sn); e("  s_cbranch_scc1 L_v2%s" % L)
        e("  s_cmp_eq_u32 s%d, 0" % sn); e("  s_cbranch_scc1 L_done%s" % L)
        block(W,acc,1); e("  s_branch L_done%s" % L)
        e("L_v2%s:" % L); block(W,acc,2); e("  s_branch L_done%s" % L)
        e("L_v3%s:" % L); block(W,acc,3); e("  s_branch L_done%s" % L)
        e("L_slow%s:" % L)
        e("  s_mul_i32 s%d, s%d, %d" % (sT,sBk,BLKS))
        e("  s_add_u32 s%d, s%d, s31" % (sT,sT))
        e("  s_add_u32 s%d, s%d, %d" % (sT,sT,(GOFF[X]-768)&0xffffffff))
        ld(W,sT)
        e("  s_waitcnt vmcnt(0)")
        e("  s_branch L_blk%s" % L)
        e("L_v4%s:" % L); block(W,acc,4)
        e("  s_sub_u32 s%d, s%d, 4" % (sn,sn))
        e("  s_cmp_eq_u32 s%d, 0" % sn); e("  s_cbranch_scc1 L_done%s" % L)
        e("  s_add_u32 s%d, s%d, 1" % (sBk,sBk))
        e("  s_cmp_lg_u32 s%d, 1" % sBk); e("  s_cbranch_scc1 L_slow%s" % L)
        for i in range(3): e("  v_mov_b32 v%d, v%d" % (W+i,CUR[X][1]+i))
        e("  s_branch L_blk%s" % L)
        e("L_done%s:" % L)
    ts("s16, 15")
    if par==0:
        e("  s_cmp_ge_u32 s%d, %d" % (sP,NS))
        e("  s_cbranch_scc1 L_epi")
    e("  v_xor_b32 v%d, 0x%x, v%d" % (vLB,TILE,vLB))
    e("  s_waitcnt vmcnt(%d)" % 0)
    if EARLY: pre(t+'e')
    ts("s16, 31")
    if not NOBAR: e("  s_barrier")
ORD=os.environ.get("ORD","cab"); DP=os.environ.get("DP","321")
SET=[(NXT,sNN),(CUR,sN)]
def fetch(X,par,d,tag):
    R,C=SET[par]; k=GR.index(X)
    if X=='c': e("  s_cmp_ge_u32 s%d, 8" % sW); e("  s_cbranch_scc1 L_nf%s" % tag)
    e("  s_add_u32 s%d, s%d, %d" % (sT2,sP,16*k+d))
    e("  s_add_u32 s%d, s%d, %d" % (sT,sSO,GOFF[X]+768*d))
    e("  v_readlane_b32 s%d, v%d, s%d" % (C[X],vCNT,sT2))
    if NOSTR and d==2: e("L_nf%s:" % tag); return
    ld(R[X][0],sT)
    e("  s_cmp_le_u32 s%d, %d" % (C[X],FB)); e("  s_cbranch_scc1 L_nf%s" % tag)
    e("  s_add_u32 s%d, s%d, %d" % (sT,sT,BLKS))
    ld(R[X][1],sT)
    e("L_nf%s:" % tag)
def phase2(par):
    t=str(par); R,C=SET[par]
    e("L_phase%s:" % t)
    ts("s16, 49")
    for n,X in enumerate(ORD):
        sn=C[X]; L=X+t; W=R[X][0]; acc=ACC[X]
        if DP: e("  s_setprio %s" % DP[n])
        e("  s_mov_b32 s%d, 0" % sBk)
        e("L_blk%s:" % L)
        e("  s_cmp_ge_u32 s%d, %d" % (sn,FB)); e("  s_cbranch_scc1 L_v4%s" % L)
        for v in range(FB-1,1,-1): e("  s_cmp_eq_u32 s%d, %d" % (sn,v)); e("  s_cbranch_scc1 L_w%d%s" % (v,L))
        e("  s_cmp_eq_u32 s%d, 0" % sn); e("  s_cbranch_scc1 L_done%s" % L)
        for v in range(1,FB):
            e("L_w%d%s:" % (v,L))
            if HS: block(W,acc,v>>1,v&1)
            else: block(W,acc,v)
            e("  s_branch L_done%s" % L)
        e("L_slow%s:" % L)
        e("  s_mul_i32 s%d, s%d, %d" % (sT,sBk,BLKS))
        e("  s_add_u32 s%d, s%d, s%d" % (sT,sT,sSO))
        e("  s_add_u32 s%d, s%d, %d" % (sT,sT,GOFF[X]))
        ld(W,sT)
        e("  s_waitcnt vmcnt(0)")
        e("  s_branch L_blk%s" % L)
        e("L_more%s:" % L)
        e("  s_add_u32 s%d, s%d, 1" % (sBk,sBk))
        e("  s_cmp_lg_u32 s%d, 1" % sBk); e("  s_cbranch_scc1 L_slow%s" % L)
        for i in range(3): e("  v_mov_b32 v%d, v%d" % (W+i,R[X][1]+i))
        e("  s_branch L_blk%s" % L)
        e("L_v4%s:" % L); block(W,acc,4)
        e("  s_sub_u32 s%d, s%d, %d" % (sn,sn,FB))
        e("  s_cmp_lg_u32 s%d, 0" % sn); e("  s_cbranch_scc1 L_more%s" % L)
        e("L_done%s:" % L)
        fetch(X,par,2,L)
    ts("s16, 16")
    if par==0:
        e("  s_cmp_ge_u32 s%d, %d" % (sP,NS-1))
        e("  s_cbranch_scc1 L_epi")
    e("  s_add_u32 s%d, s%d, 1" % (sP,sP))
    e("  s_add_u32 s%d, s%d, 768" % (sSO,sSO))
    e("  v_xor_b32 v%d, 0x%x, v%d" % (vLB,TILE,vLB))
    e("  s_waitcnt vmcnt(2)")
    if not NOBAR: e("  s_barrier")
if EARLY==2:
    e("  s_sub_u32 s%d, s%d, 768" % (sSO,sSO))
    e("  s_mov_b32 s%d, 0" % sN['c'])
    for X in GR: fetch(X,1,1,'p'+X)
    e("  s_barrier")
    phase2(0); phase2(1)
else:
    if EARLY: pre('s'); e("  s_barrier")
    phase(0); phase(1)
e("  s_branch L_phase0")
e("L_epi:")
e("  v_and_b32 v%d, 15, v%d" % (vT,vL))
e("  v_lshlrev_b32 v%d, 9, v%d" % (vT,vT))
e("  v_lshrrev_b32 v%d, 4, v%d" % (vM0,vL))
e("  v_lshl_add_u32 v%d, v%d, 3, v%d" % (vT,vM0,vT))
e("  s_lshl_b32 s%d, s%d, 13" % (sT,sRG))
e("  s_lshl_b32 s3, s%d, 6" % sCS)
e("  s_add_u32 s%d, s%d, s3" % (sT,sT))
e("  s_nop 7")
for X in GR:
    so=sT
    if X!='a': e("  s_add_u32 s%d, s%d, %d" % (sT,sT,12*8192))
    if X=='c': e("  s_cmp_ge_u32 s%d, 8" % sW); e("  s_cbranch_scc1 L_fin")
    for h in range(2):
        a=ACC[X]+4*h
        e("  v_cvt_pk_bf16_f32 v%d, v%d, v%d" % (a,a,a+1))
        e("  v_cvt_pk_bf16_f32 v%d, v%d, v%d" % (a+1,a+2,a+3))
        e("  buffer_store_dwordx2 v[%d:%d], v%d, s[8:11], s%d offen offset:%d %s" % (a,a+1,vT,so,32*h,SO))
e("L_fin:")
if DIAG:
    e("  s_waitcnt vmcnt(0)")
    ts(3)
    e("  s_lshl_b32 s3, s2, 12"); e("  s_add_u32 s3, s3, %d" % (250<<20))
    e("  v_lshlrev_b32 v0, 2, v0")
    e("  buffer_store_dword v%d, v0, s[4:7], s3 offen" % vTS)
e("L_end:")
e("  s_endpgm")
if PRE: gen_pre.emit(e,BD)
e('.section .rodata,"a"')
def desc(k,nv):
    e('.p2align 6')
    e('.amdhsa_kernel %s' % k)
    e('  .amdhsa_next_free_vgpr %d' % nv)
    e('  .amdhsa_next_free_sgpr 80')
    e('  .amdhsa_accum_offset %d' % nv)
    e('  .amdhsa_group_segment_fixed_size 0')
    e('  .amdhsa_kernarg_size 48')
    e('  .amdhsa_user_sgpr_count 2')
    e('  .amdhsa_user_sgpr_kernarg_segment_ptr 1')
    e('  .amdhsa_system_sgpr_workgroup_id_x 1')
    e('.end_amdhsa_kernel')
desc(NAME+'_kernel',NV)
if PRE: desc('pre_kernel',gen_pre.NV)
out = sys.argv[1] if len(sys.argv) > 1 else 'cdna_kernels/%s.s' % NAME
open(out,'w').write('\n'.join(o)+'\n')
```

```python
import os
GRID=1024; LDS=16384; NV=96
RS=int(os.environ.get("RS","1280")); NS=13; TILE=RS*64; PLANE=RS*32
BLKS=1024*13*768; BOFF=224<<20; HOFF=240<<20
MSKB=512; TBL=2048; INFO=2560; SORT=2816
PX=os.environ.get("PX","")
SM=os.environ.get("SM",""); SB=os.environ.get("SB",""); KK=[0]; IM=int(os.environ.get("IM","0")); HS=int(os.environ.get("HS","0")); BM=int(os.environ.get("BM","0")); BS=int(os.environ.get("BS","0")); SH=int(os.environ.get("SH","0")); BF=int(os.environ.get("BF","0"))
def emit(e0,BD):
    def e(l):
        if 'b' in PX and ('s[20:23]' in l or 'buffer_store_dwordx4' in l):
            if 'load' in l: e0("  buffer_load_dword v%d, v%d, s[12:15], 0 offen" % (52,1))
            return
        if 's' in PX and 'buffer_store_dwordx3' in l: return
        if IM and 's[16:19]' in l and not KK[0]==2: return
        if 'buffer_store_dwordx3' in l and SM: l+=' '+SM
        if 'buffer_store_dwordx4' in l and SB: l+=' '+SB
        if BF==2 and l.startswith("  s_waitcnt vmcnt(") and KK[0]: return
        e0(l)
        if 'c' in PX and l=="P_a3:": e0("  s_waitcnt vmcnt(0) lgkmcnt(0)"); e0("  s_endpgm")
    PD=int(os.environ.get("PD","0")); BF=int(os.environ.get("BF","0"))
    def ts(n):
        if PD: e("  s_memrealtime s[%d:%d]" % (62+2*n,63+2*n))
    assert RS%16==0
    vI=8; vV=20; vA=26; vR=38; vB=52; vL=1; vT=2; vU=3; vTm=4; vF=5; vZ=6
    K=823422; K2=(1<<32)//RS+1
    for c in range(16384+256): assert (c*K2)>>32==c//RS
    for s in range(3072): assert (s*K)>>27==s//163
    G=RS//16; KG=(1<<20)//G+1
    for g in range(1024+16): assert (g*KG)>>20==g//G
    sW=3
    e('.globl pre_kernel'); e('.p2align 8'); e('.type pre_kernel,@function'); e('pre_kernel:')
    e("  s_cmp_ge_u32 s2, 1024"); e("  s_cbranch_scc1 P_end")
    ts(0)
    e("  s_load_dwordx4 s[4:7], s[0:1], 0")
    e("  s_load_dwordx2 s[8:9], s[0:1], 16")
    e("  s_load_dwordx2 s[10:11], s[0:1], 40")
    e("  v_lshrrev_b32 v%d, 6, v0" % vT)
    e("  v_and_b32 v%d, 63, v0" % vL)
    e("  v_readfirstlane_b32 s%d, v%d" % (sW,vT))
    e("  v_mov_b32 v%d, 0" % vZ); e("  v_mov_b32 v%d, 0" % (vZ+1))
    e("  v_lshlrev_b32 v%d, 3, v0" % vU)
    e("  ds_write_b64 v%d, v[%d:%d]" % (vU,vZ,vZ+1))
    e("  v_lshlrev_b32 v%d, 4, v0" % vT)
    e("  s_mul_i32 s28, s2, 10432"); e("  s_mul_i32 s29, s2, 5216")
    e("  s_add_u32 s30, s28, 4096"); e("  s_add_u32 s31, s28, 8192")
    e("  s_add_u32 s56, s29, 4096")
    e("  v_cmp_gt_u32 vcc, 140, v0")
    e("  v_bfrev_b32 v%d, 1" % vF)
    e("  s_nop 0")
    e("  v_cndmask_b32 v%d, v%d, v%d, vcc" % (vTm,vF,vU))
    e("  v_cndmask_b32 v%d, v%d, v%d, vcc" % (vF,vF,vT))
    e("  s_waitcnt lgkmcnt(0)")
    for b,lo,n in ((12,4,16384*326),(16,6,16384*652),(20,8,1<<23),(24,10,1<<28)):
        e("  s_mov_b32 s%d, s%d" % (b,lo)); e("  s_mov_b32 s%d, s%d" % (b+1,lo+1))
        e("  s_mov_b32 s%d, %d" % (b+2,n)); e("  s_mov_b32 s%d, 0x20000" % (b+3))
    if BF==3:
        e("  v_lshrrev_b32 v62, 3, v%d" % vL); e("  v_and_b32 v60, 7, v%d" % vL); e("  v_lshlrev_b32 v60, 4, v60"); e("  v_lshl_add_u32 v60, v62, 9, v60")
        e("  s_lshl_b32 s58, s2, 13"); e("  s_lshl_b32 s59, s%d, 7" % sW); e("  s_add_u32 s58, s58, s59"); e("  s_add_u32 s59, s58, 4096")
        e("  buffer_load_dwordx4 v[88:91], v60, s[20:23], s58 offen")
        e("  buffer_load_dwordx4 v[92:95], v60, s[20:23], s59 offen")
    e("  buffer_load_dwordx2 v[%d:%d], v%d, s[12:15], s29 offen" % (vV,vV+1,vU))
    e("  buffer_load_dwordx4 v[%d:%d], v%d, s[16:19], s28 offen" % (vI,vI+3,vT))
    e("  buffer_load_dwordx2 v[%d:%d], v%d, s[12:15], s29 offen offset:2048" % (vV+2,vV+3,vU))
    e("  buffer_load_dwordx4 v[%d:%d], v%d, s[16:19], s30 offen" % (vI+4,vI+7,vT))
    e("  buffer_load_dwordx2 v[%d:%d], v%d, s[12:15], s56 offen" % (vV+4,vV+5,vTm))
    e("  buffer_load_dwordx4 v[%d:%d], v%d, s[16:19], s31 offen" % (vI+8,vI+11,vF))
    if IM: e("  v_mov_b32 v50, v%d" % vT); e("  s_mov_b32 s62, s28"); e("  s_mov_b32 s63, s30"); e("  s_mov_b32 s64, s31")
    vS=60; vD=61
    e("  v_lshrrev_b32 v%d, 3, v%d" % (vT,vL))
    e("  v_and_b32 v%d, 7, v%d" % (vU,vL))
    e("  v_lshlrev_b32 v%d, 4, v%d" % (vS,vU))
    e("  v_lshl_add_u32 v%d, v%d, 9, v%d" % (vS,vT,vS))
    e("  s_lshl_b32 s28, s2, 13"); e("  s_lshl_b32 s29, s%d, 7" % sW); e("  s_add_u32 s28, s28, s29"); e("  s_add_u32 s29, s28, 4096")
    if BF:
        vB=88; vD=87
        e("  s_mov_b32 s61, s28")
    else:
        e("  buffer_load_dwordx4 v[%d:%d], v%d, s[20:23], s28 offen" % (vB,vB+3,vS))
        e("  buffer_load_dwordx4 v[%d:%d], v%d, s[20:23], s29 offen" % (vB+4,vB+7,vS))
    nb=0 if BF else 2
    if BM:
        e("  v_bfe_u32 v%d, v%d, 1, 4" % (vT,vL)); e("  v_lshlrev_b32 v%d, 9, v%d" % (vS,vT))
        e("  v_lshrrev_b32 v%d, 5, v%d" % (vT,vL)); e("  v_lshl_add_u32 v%d, v%d, 5, v%d" % (vS,vT,vS))
        e("  v_and_b32 v%d, 1, v%d" % (vU,vL)); e("  v_lshl_add_u32 v%d, v%d, 4, v%d" % (vS,vU,vS))
    def bld():
        e("  s_add_u32 s29, s61, %d" % (64 if BM else 4096))
        e("  buffer_load_dwordx4 v[%d:%d], v%d, s[20:23], s61 offen" % (vB,vB+3,vS))
        e("  buffer_load_dwordx4 v[%d:%d], v%d, s[20:23], s29 offen" % (vB+4,vB+7,vS))
    def bst(n=0):
        e("  s_waitcnt vmcnt(%d)" % n)
        e("  buffer_store_dwordx4 v[%d:%d], v%d, s[24:27], s57 offen" % (vB,vB+3,vD))
        if BM:
            e("  s_add_u32 s57, s57, %d" % (13*TILE))
            e("  buffer_store_dwordx4 v[%d:%d], v%d, s[24:27], s57 offen" % (vB+4,vB+7,vD))
        else: e("  buffer_store_dwordx4 v[%d:%d], v%d, s[24:27], s57 offen offset:256" % (vB+4,vB+7,vD))
    e("  v_lshlrev_b32 v%d, 5, v%d" % (vD,vT))
    e("  v_and_b32 v%d, 1, v%d" % (vT,vL)); e("  v_lshl_add_u32 v%d, v%d, 4, v%d" % (vD,vT,vD))
    e("  s_mov_b32 s28, %d" % PLANE); e("  s_mov_b32 s29, %d" % (13*TILE))
    e("  v_bfe_u32 v%d, v%d, 1, 1" % (vT,vL)); e("  v_mad_u32_u24 v%d, v%d, s28, v%d" % (vD,vT,vD))
    e("  v_bfe_u32 v%d, v%d, 2, 1" % (vT,vL)); e("  v_mad_u32_u24 v%d, v%d, s29, v%d" % (vD,vT,vD))
    if BM:
        e("  v_and_b32 v%d, 31, v%d" % (vD,vL)); e("  v_lshlrev_b32 v%d, 4, v%d" % (vD,vD))
        e("  v_lshrrev_b32 v%d, 5, v%d" % (vT,vL)); e("  v_mad_u32_u24 v%d, v%d, s28, v%d" % (vD,vT,vD))
    e("  s_add_u32 s29, s2, %d" % (16 if SH else 0))
    e("  s_mul_i32 s28, s29, %d" % KG); e("  s_lshr_b32 s28, s28, 20")
    e("  s_mul_i32 s28, s28, %d" % (TILE-G*512)); e("  s_lshl_b32 s29, s29, 9"); e("  s_add_u32 s28, s28, s29")
    e("  s_mul_i32 s29, s%d, %d" % (sW,26*TILE)); e("  s_add_u32 s28, s28, s29"); e("  s_add_u32 s57, s28, %d" % BOFF)
    e("  v_mul_u32_u24 v%d, %d, v0" % (vTm,4*K))
    e("  v_mov_b32 v%d, 4" % vF)
    e("  s_mov_b32 s28, %d" % ((-RS)&0xffffffff))
    e("  s_mov_b32 s30, 0x05040100"); e("  s_mov_b32 s31, 0x07060100")
    e("  s_barrier")
    if BF==3: bst(6)
    def mk(k,i): return 32+2*(4*k+i)
    def cmps(k):
        for i in range(4):
            e("  v_cmp_neq_f16_sdwa s[%d:%d], v%d, v%d src0_sel:WORD_%d src1_sel:DWORD" % (mk(k,i),mk(k,i)+1,vV+2*k+(i>>1),vZ,i&1))
    if IM:
        KK[0]=2
        if IM==2: bld()
        for k in range(3):
            e("  s_waitcnt vmcnt(%d)" % (4 if IM==2 else 2))
            cmps(k)
            e("  s_or_b64 s[58:59], s[%d:%d], s[%d:%d]" % (mk(k,0),mk(k,0)+1,mk(k,1),mk(k,1)+1))
            e("  s_or_b64 exec, s[%d:%d], s[%d:%d]" % (mk(k,2),mk(k,2)+1,mk(k,3),mk(k,3)+1))
            e("  s_or_b64 exec, exec, s[58:59]")
            e("  buffer_load_dwordx4 v[%d:%d], v50, s[16:19], s%d offen" % (vI+4*k,vI+4*k+3,62+k))
            e("  s_mov_b64 exec, -1")
        if IM==2: bst(3)
    for k in range(3):
        KK[0]=(k==2)
        if k==2: e("  s_cmp_eq_u32 s%d, 3" % sW); e("  s_cbranch_scc1 P_a3")
        if IM: e("  s_waitcnt vmcnt(%d)" % (2-k))
        else:
            e("  s_waitcnt vmcnt(%d)" % (5+nb-2*k))
            cmps(k)
            e("  s_waitcnt vmcnt(%d)" % (4+nb-2*k))
        if BF==2 and k==1: e("  s_waitcnt vmcnt(0)"); bld()
        if k==0: ts(1)
        for i in range(4):
            c=vI+4*k+i; a=vA+4*k+i
            e("  s_mov_b64 exec, s[%d:%d]" % (mk(k,i),mk(k,i)+1))
            if SH: e("  v_add_u32 v%d, 256, v%d" % (c,c))
            e("  v_mul_hi_u32_u24 v%d, %d, v%d" % (vT,K2,c))
            e("  v_lshlrev_b32 v%d, 29, v%d" % (vU,c))
            e("  v_alignbit_b32 v%d, v%d, v%d, 27" % (a,vT,vU))
            e("  ds_add_rtn_u32 v%d, v%d, v%d" % (vR+4*k+i,a,vF))
            e("  v_mad_i32_i24 v%d, v%d, s28, v%d" % (c,vT,c))
            e("  v_add_u32 v%d, %d, v%d" % (vU,(1024*k+i)*K,vTm))
            e("  v_alignbit_b32 v%d, v%d, v%d, 27" % (c,c,vU))
            e("  v_perm_b32 v%d, v%d, v%d, s%d" % (c,vV+2*k+(i>>1),c,30+(i&1)))
        e("  s_mov_b64 exec, -1")
    KK[0]=0
    e("P_a3:")
    ts(2)
    if BF==1 and IM!=2: bld()
    if not BF: bst()
    e("  s_cmp_lg_u32 s%d, 0" % sW)
    e("  s_waitcnt lgkmcnt(0)")
    e("  s_barrier")
    ts(3)
    e("  s_cbranch_scc1 P_np")
    c0,c1,x,y,tot,cap=62,63,64,65,66,67; q4=68
    dp="row_mask:0xf bank_mask:0xf"
    e("  v_lshlrev_b32 v%d, 3, v%d" % (vT,vL))
    e("  ds_read_b64 v[%d:%d], v%d" % (c0,c1,vT))
    e("  s_mov_b32 s58, 0x88888888"); e("  s_mov_b32 s59, s58")
    e("  s_waitcnt lgkmcnt(0)")
    e("  v_add_u32 v%d, v%d, v%d" % (x,c0,c1)); e("  s_nop 1")
    e("  v_add_u32_dpp v%d, v%d, v%d quad_perm:[1,0,3,2] %s" % (y,x,x,dp)); e("  s_nop 1")
    e("  v_add_u32_dpp v%d, v%d, v%d quad_perm:[2,3,0,1] %s" % (tot,y,y,dp))
    e("  v_add_u32 v%d, %d, v%d" % (cap,63 if HS else 127,tot)); e("  v_and_b32 v%d, %s, v%d" % (cap,"0xffffffc0" if HS else "0xffffff80",cap))
    e("  v_sub_u32 v%d, v%d, v%d" % (y,cap,tot))
    e("  v_cndmask_b32 v%d, 0, v%d, s[58:59]" % (y,y))
    e("  v_add_u32 v%d, v%d, v%d" % (x,x,y))
    e("  v_mov_b32 v%d, v%d" % (y,x))
    for sh in (1,2,4,8):
        e("  s_nop 1"); e("  v_add_u32_dpp v%d, v%d, v%d row_shr:%d %s" % (y,y,y,sh,dp))
    e("  s_nop 1"); e("  v_add_u32_dpp v%d, v%d, v%d row_bcast:15 row_mask:0xa bank_mask:0xf" % (y,y,y))
    e("  s_nop 1"); e("  v_add_u32_dpp v%d, v%d, v%d row_bcast:31 row_mask:0xc bank_mask:0xf" % (y,y,y))
    e("  v_sub_u32 v%d, v%d, v%d" % (y,y,x))
    e("  v_add_u32 v%d, %d, v%d" % (x,SORT,y))
    e("  v_add_u32 v%d, v%d, v%d" % (y,x,c0))
    e("  ds_write_b64 v%d, v[%d:%d] offset:%d" % (vT,x,y,TBL))
    e("  v_add_u32 v%d, v%d, v%d" % (q4,x,tot))
    e("  v_mov_b32 v%d, v%d" % (q4+1,x))
    e("  v_lshrrev_b32 v%d, 3, v%d" % (q4+2,cap))
    e("  v_lshrrev_b32 v%d, %d, v%d" % (cap,6 if HS else 7,cap))
    e("  v_cvt_f32_u32 v%d, v%d" % (y,cap)); e("  v_rcp_f32 v%d, v%d" % (y,y))
    e("  v_mov_b32 v%d, 0x43800000" % tot)
    e("  v_fma_f32 v%d, v%d, v%d, 0.5" % (y,y,tot))
    e("  v_cvt_u32_f32 v%d, v%d" % (y,y))
    e("  v_add_u32 v%d, 1, v%d" % (q4+3,y))
    e("  v_lshlrev_b32 v%d, 2, v%d" % (vT,vL))
    e("  s_lshl_b32 s29, s2, 6"); e("  s_add_u32 s29, s29, %d" % HOFF)
    e("  s_mov_b32 exec_lo, 0x11111111"); e("  s_mov_b32 exec_hi, 0x11111111")
    e("  ds_write_b128 v%d, v[%d:%d] offset:%d" % (vT,q4,q4+3,INFO))
    e("  buffer_store_dword v%d, v%d, s[24:27], s29 offen" % (cap,vL))
    e("  s_mov_b64 exec, -1")
    e("  s_waitcnt lgkmcnt(0)")
    e("P_np:")
    pos1,C1,pos2,C2,b0,b1,vMB,vMr,vL12,d4,dd,vIA=70,71,72,73,74,75,76,77,78,79,80,81
    t1,t2,t3=82,83,84
    e("  v_bfe_u32 v%d, v%d, 4, 1" % (t1,vL))
    e("  v_bfe_u32 v%d, v%d, 2, 2" % (t2,vL))
    e("  v_and_b32 v%d, 3, v%d" % (t3,vL))
    e("  v_lshl_add_u32 v%d, v%d, 2, v%d" % (pos1,t1,t2))
    e("  v_and_b32 v%d, 1, v%d" % (pos2,vL)); e("  v_lshlrev_b32 v%d, 1, v%d" % (pos2,pos2))
    e("  v_lshl_add_u32 v%d, v%d, 2, v%d" % (pos2,t1,pos2))
    e("  v_lshrrev_b32 v%d, 5, v%d" % (t1,vL))
    e("  v_lshlrev_b32 v%d, 3, v%d" % (C1,t1))
    e("  v_lshl_add_u32 v%d, v%d, 4, v%d" % (C2,t2,C1))
    e("  v_lshl_add_u32 v%d, v%d, 4, v%d" % (C1,t3,C1))
    e("  v_bfe_u32 v%d, v%d, 1, 1" % (b0,vL)); e("  v_lshl_add_u32 v%d, v%d, 2, v%d" % (C2,b0,C2))
    e("  v_lshlrev_b32 v%d, 6, v%d" % (vIA,t1))
    e("  s_lshl_b32 s29, s%d, 4" % sW); e("  v_add_u32 v%d, s29, v%d" % (vIA,vIA))
    e("  v_bfe_u32 v%d, v%d, 2, 1" % (b0,vL)); e("  v_lshl_add_u32 v%d, v%d, 4, 15" % (b0,b0))
    e("  v_and_b32 v%d, 8, v%d" % (b1,vL)); e("  v_sub_u32 v%d, v%d, v%d" % (b0,b0,b1))
    e("  v_lshlrev_b32 v%d, 1, v%d" % (t3,t3)); e("  v_sub_u32 v%d, v%d, v%d" % (b0,b0,t3))
    e("  v_lshlrev_b32 v%d, v%d, 1" % (b0,b0)); e("  v_lshrrev_b32 v%d, 1, v%d" % (b1,b0))
    e("  s_lshl_b32 s29, s%d, 8" % sW); e("  s_add_u32 s29, s29, %d" % MSKB)
    e("  v_lshl_add_u32 v%d, v%d, 2, s29" % (vMr,vL))
    e("  v_and_b32 v%d, 0xffffffc0, v%d" % (vMB,vMr))
    e("  v_mul_u32_u24 v%d, 12, v%d" % (vL12,vL))
    e("  v_bfe_u32 v%d, v%d, %s" % (d4,vL,"1, 3" if HS else "2, 3"))
    XA,XV,C1h,C2h=85,86,68,69
    if HS:
        e("  v_and_b32 v%d, 3, v%d" % (XA,vL)); e("  v_lshlrev_b32 v%d, 4, v%d" % (XA,XA))
        e("  v_and_b32 v%d, 12, v%d" % (XV,vL)); e("  v_lshlrev_b32 v%d, 2, v%d" % (XV,XV))
        e("  v_lshl_add_u32 v%d, v%d, 2, v%d" % (C1h,t1,XA)); e("  v_lshl_add_u32 v%d, v%d, 2, v%d" % (C2h,t1,XV))
    e("  v_and_b32 v%d, 31, v%d" % (dd,vL)); e("  v_lshlrev_b32 v%d, 2, v%d" % (dd,dd))
    e("  s_barrier")
    ts(4)
    vTb=52
    def pr(n):
        e("  s_mov_b64 exec, s[%d:%d]" % (32+2*n,33+2*n))
        e("  ds_read_b32 v%d, v%d offset:%d" % (vTb+n,vA+n,TBL))
    i0,i1=20,64
    e("  ds_read_b128 v[%d:%d], v%d offset:%d" % (i0,i0+3,vIA,INFO))
    e("  ds_read_b128 v[%d:%d], v%d offset:%d" % (i1,i1+3,vIA,INFO+128))
    for n in range(8): pr(n)
    e("  s_cmp_eq_u32 s%d, 3" % sW); e("  s_cbranch_scc1 P_b3")
    for n in range(8,12): pr(n)
    e("  s_waitcnt lgkmcnt(0)")
    def pb(n):
        e("  s_mov_b64 exec, s[%d:%d]" % (32+2*n,33+2*n))
        e("  v_add_u32 v%d, v%d, v%d" % (vTb+n,vTb+n,vR+n))
        e("  ds_write_b32 v%d, v%d" % (vTb+n,vI+n))
    for n in range(8,12): pb(n)
    e("P_b3:")
    e("  s_waitcnt lgkmcnt(4)" if False else "  s_waitcnt lgkmcnt(0)")
    for n in range(8): pb(n)
    e("  s_mov_b64 exec, -1")
    e("  s_mov_b32 s28, 256")
    if BS==1: bst()
    for r,ii in enumerate((i0,i1)):
        A,off,S4,M=ii,ii+1,ii+2,ii+3; t=16+r
        e("  v_mad_u32_u24 v%d, v%d, v%d, s28" % (M,d4,M))
        e("  v_lshrrev_b32 v%d, 8, v%d" % (M,M))
        e("  v_add_u32 v%d, v%d, v%d" % (A,A,dd))
        e("  v_mul_u32_u24 v%d, v%d, v%d" % (M,M,S4))
        e("  v_sub_u32 v%d, v%d, v%d" % (M,A,M))
        e("  v_max_i32 v%d, v%d, v%d" % (M,M,off))
        e("  v_lshl_add_u32 v%d, v%d, 3, v%d" % (t,S4,off))
        e("  v_cmp_lt_u32 s[%d:%d], v%d, v%d" % (32+2*r,33+2*r,A,t))
    for j in range(4):
        ii=(i0,i1)[j>>1]
        e("  v_readlane_b32 s%d, v%d, %d" % (40+j,ii+1,32*(j&1)))
        e("  v_readlane_b32 s%d, v%d, %d" % (44+j,ii+2,32*(j&1)))
    e("  s_mul_i32 s48, s2, %d" % (13*768)); e("  s_mul_i32 s29, s%d, 768" % sW); e("  s_add_u32 s48, s48, s29")
    e("  s_mov_b32 s60, 0xffe0ffe0")
    e("  s_waitcnt lgkmcnt(0)")
    e("  s_barrier")
    ts(5)
    for r,ii in enumerate((i0,i1)): e("  ds_read_u16 v%d, v%d" % (16+r,ii+3))
    aj=[(4+3*j,5+3*j,6+3*j) if j else (26,27,28) for j in range(4)]
    aj[1]=(29,30,31); aj[2]=(8,9,10); aj[3]=(11,12,13)
    def adr(j,rem):
        a1,a2,a3=aj[j]; c1,c2=C1,C2
        if HS:
            e("  s_and_b32 s29, s%d, -16" % rem)
            e("  v_cmp_eq_u32 vcc, s29, v%d" % XA); e("  v_cmp_eq_u32 s[58:59], s29, v%d" % XV)
            e("  s_nop 0")
            e("  v_cndmask_b32 v%d, v%d, v%d, vcc" % (a1,C1,C1h)); e("  v_cndmask_b32 v%d, v%d, v%d, s[58:59]" % (a2,C2,C2h))
            c1,c2=a1,a2
        e("  v_mad_u32_u24 v%d, v%d, s%d, v%d" % (a1,pos1,44+j,c1))
        e("  v_mad_u32_u24 v%d, v%d, s%d, v%d" % (a2,pos2,44+j,c2))
        e("  v_add_u32 v%d, s%d, v%d" % (a1,40+j,a1))
        e("  v_add_u32 v%d, s%d, v%d" % (a2,40+j,a2))
        e("  v_add_u32 v%d, s%d, v%d" % (a3,44+j,a2))
    for j in range(4): adr(j,44+j)
    e("  s_waitcnt lgkmcnt(0)")
    for r,ii in enumerate((i0,i1)):
        e("  s_mov_b64 exec, s[%d:%d]" % (32+2*r,33+2*r))
        e("  ds_write_b32 v%d, v%d" % (ii,16+r))
    e("  s_mov_b64 exec, -1")
    def rd(j):
        a1,a2,a3=aj[j]; E=32+2*j; O=40+4*j
        e("  ds_read2_b32 v[%d:%d], v%d offset1:1" % (E,E+1,a1))
        e("  ds_read_u16 v%d, v%d offset:2" % (O+1,a2))
        e("  ds_read_b32 v%d, v%d" % (O+3,a3))
    def cp(j):
        E=32+2*j; O=40+4*j
        e("  v_and_b32 v%d, 15, v%d" % (t1,E)); e("  v_and_b32 v%d, 15, v%d" % (t2,E+1))
        e("  v_lshl_add_u32 v%d, v%d, 2, v%d" % (t1,t1,vMB)); e("  v_lshl_add_u32 v%d, v%d, 2, v%d" % (t2,t2,vMB))
        e("  ds_or_b32 v%d, v%d" % (t1,b0)); e("  ds_or_b32 v%d, v%d" % (t2,b1))
        e("  ds_wrxchg_rtn_b32 v%d, v%d, v%d" % (O+2,vMr,vZ))
        e("  v_perm_b32 v%d, v%d, v%d, s30" % (O,E+1,E))
        e("  v_perm_b32 v%d, v%d, v%d, s31" % (O+1,O+3,O+1))
        e("  v_and_b32 v%d, s60, v%d" % (O,O))
    def st(j,so): e("  buffer_store_dwordx3 v[%d:%d], v%d, s[24:27], s%d offen" % (40+4*j,42+4*j,vL12,so))
    for j in range(4): rd(j)
    if BF in (1,2) and not BS and IM!=2: bst()
    for j in range(3):
        e("  s_waitcnt lgkmcnt(9)")
        cp(j)
    for j in range(1,4): e("  s_add_u32 s%d, s48, %d" % (48+j,j*4*768))
    e("  s_cmp_lg_u32 s%d, 0" % sW)
    e("  s_cbranch_scc1 P_c3")
    e("  s_waitcnt lgkmcnt(9)")
    cp(3)
    e("  s_waitcnt lgkmcnt(0)")
    st(3,51)
    e("P_c3:")
    e("  s_waitcnt lgkmcnt(0)")
    for j in range(3): st(j,48+j)
    if PD:
        ts(6); e("  s_waitcnt vmcnt(0)"); ts(7); e("  s_waitcnt lgkmcnt(0)")
        for n in range(8): e("  v_writelane_b32 v2, s%d, %d" % (62+2*n,n))
        e("  s_lshl_b32 s29, s2, 10"); e("  s_add_u32 s29, s29, %d" % (250<<20))
        e("  v_lshlrev_b32 v0, 2, v0"); e("  buffer_store_dword v2, v0, s[24:27], s29 offen")
    for j in range(4):
        a1,a2,a3=aj[j]
        if j==3: e("  s_cmp_lg_u32 s%d, 0" % sW); e("  s_cbranch_scc1 P_end")
        e("  s_min_u32 s28, s%d, %d" % (44+j,84*16))
        e("P_l%d:" % j)
        e("  s_cmp_le_u32 s28, 64"); e("  s_cbranch_scc1 P_d%d" % j)
        e("  s_sub_u32 s28, s28, 64")
        e("  s_add_u32 s%d, s%d, 64" % (40+j,40+j))
        adr(j,28)
        e("  s_add_u32 s%d, s%d, %d" % (48+j,48+j,BLKS))
        e("  s_waitcnt vmcnt(0)")
        rd(j); e("  s_waitcnt lgkmcnt(0)"); cp(j); e("  s_waitcnt lgkmcnt(0)"); st(j,48+j)
        e("  s_branch P_l%d" % j)
        e("P_d%d:" % j)
    e("P_end:")
    e("  s_endpgm")
```

```python
import os
GRID=1024; LDS=16384; NV=96
RS=int(os.environ.get("RS","1280")); NS=13; TILE=RS*64; PLANE=RS*32
BLKS=1024*13*768; BOFF=224<<20; HOFF=240<<20
MSKB=512; TBL=2048; INFO=2560; SORT=2816
PX=os.environ.get("PX","")
SM=os.environ.get("SM",""); SB=os.environ.get("SB",""); KK=[0]; IM=int(os.environ.get("IM","0")); HS=int(os.environ.get("HS","0")); BM=int(os.environ.get("BM","0")); BS=int(os.environ.get("BS","0")); SH=int(os.environ.get("SH","0")); BF=int(os.environ.get("BF","0"))
def emit(e0,BD):
    def e(l):
        if 'b' in PX and ('s[20:23]' in l or 'buffer_store_dwordx4' in l):
            if 'load' in l: e0("  buffer_load_dword v%d, v%d, s[12:15], 0 offen" % (52,1))
            return
        if 's' in PX and 'buffer_store_dwordx3' in l: return
        if IM and 's[16:19]' in l and not KK[0]==2: return
        if 'buffer_store_dwordx3' in l and SM: l+=' '+SM
        if 'buffer_store_dwordx4' in l and SB: l+=' '+SB
        if BF==2 and l.startswith("  s_waitcnt vmcnt(") and KK[0]: return
        e0(l)
        if 'c' in PX and l=="P_a3:": e0("  s_waitcnt vmcnt(0) lgkmcnt(0)"); e0("  s_endpgm")
    PD=int(os.environ.get("PD","0")); BF=int(os.environ.get("BF","0"))
    def ts(n):
        if PD: e("  s_memrealtime s[%d:%d]" % (62+2*n,63+2*n))
    assert RS%16==0
    vI=8; vV=20; vA=26; vR=38; vB=52; vL=1; vT=2; vU=3; vTm=4; vF=5; vZ=6
    K=823422; K2=(1<<32)//RS+1
    for c in range(16384+256): assert (c*K2)>>32==c//RS
    for s in range(3072): assert (s*K)>>27==s//163
    G=RS//16; KG=(1<<20)//G+1
    for g in range(1024+16): assert (g*KG)>>20==g//G
    sW=3
    e('.globl pre_kernel'); e('.p2align 8'); e('.type pre_kernel,@function'); e('pre_kernel:')
    e("  s_cmp_ge_u32 s2, 1024"); e("  s_cbranch_scc1 P_end")
    ts(0)
    e("  s_load_dwordx4 s[4:7], s[0:1], 0")
    e("  s_load_dwordx2 s[8:9], s[0:1], 16")
    e("  s_load_dwordx2 s[10:11], s[0:1], 40")
    e("  v_lshrrev_b32 v%d, 6, v0" % vT)
    e("  v_and_b32 v%d, 63, v0" % vL)
    e("  v_readfirstlane_b32 s%d, v%d" % (sW,vT))
    e("  v_mov_b32 v%d, 0" % vZ); e("  v_mov_b32 v%d, 0" % (vZ+1))
    e("  v_lshlrev_b32 v%d, 3, v0" % vU)
    e("  ds_write_b64 v%d, v[%d:%d]" % (vU,vZ,vZ+1))
    e("  v_lshlrev_b32 v%d, 4, v0" % vT)
    e("  s_mul_i32 s28, s2, 10432"); e("  s_mul_i32 s29, s2, 5216")
    e("  s_add_u32 s30, s28, 4096"); e("  s_add_u32 s31, s28, 8192")
    e("  s_add_u32 s56, s29, 4096")
    e("  v_cmp_gt_u32 vcc, 140, v0")
    e("  v_bfrev_b32 v%d, 1" % vF)
    e("  s_nop 0")
    e("  v_cndmask_b32 v%d, v%d, v%d, vcc" % (vTm,vF,vU))
    e("  v_cndmask_b32 v%d, v%d, v%d, vcc" % (vF,vF,vT))
    e("  s_waitcnt lgkmcnt(0)")
    for b,lo,n in ((12,4,16384*326),(16,6,16384*652),(20,8,1<<23),(24,10,1<<28)):
        e("  s_mov_b32 s%d, s%d" % (b,lo)); e("  s_mov_b32 s%d, s%d" % (b+1,lo+1))
        e("  s_mov_b32 s%d, %d" % (b+2,n)); e("  s_mov_b32 s%d, 0x20000" % (b+3))
    if BF==3:
        e("  v_lshrrev_b32 v62, 3, v%d" % vL); e("  v_and_b32 v60, 7, v%d" % vL); e("  v_lshlrev_b32 v60, 4, v60"); e("  v_lshl_add_u32 v60, v62, 9, v60")
        e("  s_lshl_b32 s58, s2, 13"); e("  s_lshl_b32 s59, s%d, 7" % sW); e("  s_add_u32 s58, s58, s59"); e("  s_add_u32 s59, s58, 4096")
        e("  buffer_load_dwordx4 v[88:91], v60, s[20:23], s58 offen")
        e("  buffer_load_dwordx4 v[92:95], v60, s[20:23], s59 offen")
    e("  buffer_load_dwordx2 v[%d:%d], v%d, s[12:15], s29 offen" % (vV,vV+1,vU))
    e("  buffer_load_dwordx4 v[%d:%d], v%d, s[16:19], s28 offen" % (vI,vI+3,vT))
    e("  buffer_load_dwordx2 v[%d:%d], v%d, s[12:15], s29 offen offset:2048" % (vV+2,vV+3,vU))
    e("  buffer_load_dwordx4 v[%d:%d], v%d, s[16:19], s30 offen" % (vI+4,vI+7,vT))
    e("  buffer_load_dwordx2 v[%d:%d], v%d, s[12:15], s56 offen" % (vV+4,vV+5,vTm))
    e("  buffer_load_dwordx4 v[%d:%d], v%d, s[16:19], s31 offen" % (vI+8,vI+11,vF))
    if IM: e("  v_mov_b32 v50, v%d" % vT); e("  s_mov_b32 s62, s28"); e("  s_mov_b32 s63, s30"); e("  s_mov_b32 s64, s31")
    vS=60; vD=61
    e("  v_lshrrev_b32 v%d, 3, v%d" % (vT,vL))
    e("  v_and_b32 v%d, 7, v%d" % (vU,vL))
    e("  v_lshlrev_b32 v%d, 4, v%d" % (vS,vU))
    e("  v_lshl_add_u32 v%d, v%d, 9, v%d" % (vS,vT,vS))
    e("  s_lshl_b32 s28, s2, 13"); e("  s_lshl_b32 s29, s%d, 7" % sW); e("  s_add_u32 s28, s28, s29"); e("  s_add_u32 s29, s28, 4096")
    if BF:
        vB=88; vD=87
        e("  s_mov_b32 s61, s28")
    else:
        e("  buffer_load_dwordx4 v[%d:%d], v%d, s[20:23], s28 offen" % (vB,vB+3,vS))
        e("  buffer_load_dwordx4 v[%d:%d], v%d, s[20:23], s29 offen" % (vB+4,vB+7,vS))
    nb=0 if BF else 2
    if BM:
        e("  v_bfe_u32 v%d, v%d, 1, 4" % (vT,vL)); e("  v_lshlrev_b32 v%d, 9, v%d" % (vS,vT))
        e("  v_lshrrev_b32 v%d, 5, v%d" % (vT,vL)); e("  v_lshl_add_u32 v%d, v%d, 5, v%d" % (vS,vT,vS))
        e("  v_and_b32 v%d, 1, v%d" % (vU,vL)); e("  v_lshl_add_u32 v%d, v%d, 4, v%d" % (vS,vU,vS))
    def bld():
        e("  s_add_u32 s29, s61, %d" % (64 if BM else 4096))
        e("  buffer_load_dwordx4 v[%d:%d], v%d, s[20:23], s61 offen" % (vB,vB+3,vS))
        e("  buffer_load_dwordx4 v[%d:%d], v%d, s[20:23], s29 offen" % (vB+4,vB+7,vS))
    def bst(n=0):
        e("  s_waitcnt vmcnt(%d)" % n)
        e("  buffer_store_dwordx4 v[%d:%d], v%d, s[24:27], s57 offen" % (vB,vB+3,vD))
        if BM:
            e("  s_add_u32 s57, s57, %d" % (13*TILE))
            e("  buffer_store_dwordx4 v[%d:%d], v%d, s[24:27], s57 offen" % (vB+4,vB+7,vD))
        else: e("  buffer_store_dwordx4 v[%d:%d], v%d, s[24:27], s57 offen offset:256" % (vB+4,vB+7,vD))
    e("  v_lshlrev_b32 v%d, 5, v%d" % (vD,vT))
    e("  v_and_b32 v%d, 1, v%d" % (vT,vL)); e("  v_lshl_add_u32 v%d, v%d, 4, v%d" % (vD,vT,vD))
    e("  s_mov_b32 s28, %d" % PLANE); e("  s_mov_b32 s29, %d" % (13*TILE))
    e("  v_bfe_u32 v%d, v%d, 1, 1" % (vT,vL)); e("  v_mad_u32_u24 v%d, v%d, s28, v%d" % (vD,vT,vD))
    e("  v_bfe_u32 v%d, v%d, 2, 1" % (vT,vL)); e("  v_mad_u32_u24 v%d, v%d, s29, v%d" % (vD,vT,vD))
    if BM:
        e("  v_and_b32 v%d, 31, v%d" % (vD,vL)); e("  v_lshlrev_b32 v%d, 4, v%d" % (vD,vD))
        e("  v_lshrrev_b32 v%d, 5, v%d" % (vT,vL)); e("  v_mad_u32_u24 v%d, v%d, s28, v%d" % (vD,vT,vD))
    e("  s_add_u32 s29, s2, %d" % (16 if SH else 0))
    e("  s_mul_i32 s28, s29, %d" % KG); e("  s_lshr_b32 s28, s28, 20")
    e("  s_mul_i32 s28, s28, %d" % (TILE-G*512)); e("  s_lshl_b32 s29, s29, 9"); e("  s_add_u32 s28, s28, s29")
    e("  s_mul_i32 s29, s%d, %d" % (sW,26*TILE)); e("  s_add_u32 s28, s28, s29"); e("  s_add_u32 s57, s28, %d" % BOFF)
    e("  v_mul_u32_u24 v%d, %d, v0" % (vTm,4*K))
    e("  v_mov_b32 v%d, 4" % vF)
    e("  s_mov_b32 s28, %d" % ((-RS)&0xffffffff))
    e("  s_mov_b32 s30, 0x05040100"); e("  s_mov_b32 s31, 0x07060100")
    e("  s_barrier")
    if BF==3: bst(6)
    def mk(k,i): return 32+2*(4*k+i)
    def cmps(k):
        for i in range(4):
            e("  v_cmp_neq_f16_sdwa s[%d:%d], v%d, v%d src0_sel:WORD_%d src1_sel:DWORD" % (mk(k,i),mk(k,i)+1,vV+2*k+(i>>1),vZ,i&1))
    if IM:
        KK[0]=2
        if IM==2: bld()
        for k in range(3):
            e("  s_waitcnt vmcnt(%d)" % (4 if IM==2 else 2))
            cmps(k)
            e("  s_or_b64 s[58:59], s[%d:%d], s[%d:%d]" % (mk(k,0),mk(k,0)+1,mk(k,1),mk(k,1)+1))
            e("  s_or_b64 exec, s[%d:%d], s[%d:%d]" % (mk(k,2),mk(k,2)+1,mk(k,3),mk(k,3)+1))
            e("  s_or_b64 exec, exec, s[58:59]")
            e("  buffer_load_dwordx4 v[%d:%d], v50, s[16:19], s%d offen" % (vI+4*k,vI+4*k+3,62+k))
            e("  s_mov_b64 exec, -1")
        if IM==2: bst(3)
        if IM==3: bld()
    for k in range(3):
        KK[0]=(k==2)
        if k==2: e("  s_cmp_eq_u32 s%d, 3" % sW); e("  s_cbranch_scc1 P_a3")
        if IM: e("  s_waitcnt vmcnt(%d)" % (2-k+(2 if IM==3 else 0)))
        else:
            e("  s_waitcnt vmcnt(%d)" % (5+nb-2*k))
            cmps(k)
            e("  s_waitcnt vmcnt(%d)" % (4+nb-2*k))
        if BF==2 and k==1: e("  s_waitcnt vmcnt(0)"); bld()
        if k==0: ts(1)
        for i in range(4):
            c=vI+4*k+i; a=vA+4*k+i
            e("  s_mov_b64 exec, s[%d:%d]" % (mk(k,i),mk(k,i)+1))
            if SH: e("  v_add_u32 v%d, 256, v%d" % (c,c))
            e("  v_mul_hi_u32_u24 v%d, %d, v%d" % (vT,K2,c))
            e("  v_lshlrev_b32 v%d, 29, v%d" % (vU,c))
            e("  v_alignbit_b32 v%d, v%d, v%d, 27" % (a,vT,vU))
            e("  ds_add_rtn_u32 v%d, v%d, v%d" % (vR+4*k+i,a,vF))
            e("  v_mad_i32_i24 v%d, v%d, s28, v%d" % (c,vT,c))
            e("  v_add_u32 v%d, %d, v%d" % (vU,(1024*k+i)*K,vTm))
            e("  v_alignbit_b32 v%d, v%d, v%d, 27" % (c,c,vU))
            e("  v_perm_b32 v%d, v%d, v%d, s%d" % (c,vV+2*k+(i>>1),c,30+(i&1)))
        e("  s_mov_b64 exec, -1")
    KK[0]=0
    e("P_a3:")
    ts(2)
    if BF==1 and IM<2: bld()
    if not BF: bst()
    e("  s_cmp_lg_u32 s%d, 0" % sW)
    e("  s_waitcnt lgkmcnt(0)")
    e("  s_barrier")
    ts(3)
    e("  s_cbranch_scc1 P_np")
    c0,c1,x,y,tot,cap=62,63,64,65,66,67; q4=68
    dp="row_mask:0xf bank_mask:0xf"
    e("  v_lshlrev_b32 v%d, 3, v%d" % (vT,vL))
    e("  ds_read_b64 v[%d:%d], v%d" % (c0,c1,vT))
    e("  s_mov_b32 s58, 0x88888888"); e("  s_mov_b32 s59, s58")
    e("  s_waitcnt lgkmcnt(0)")
    e("  v_add_u32 v%d, v%d, v%d" % (x,c0,c1)); e("  s_nop 1")
    e("  v_add_u32_dpp v%d, v%d, v%d quad_perm:[1,0,3,2] %s" % (y,x,x,dp)); e("  s_nop 1")
    e("  v_add_u32_dpp v%d, v%d, v%d quad_perm:[2,3,0,1] %s" % (tot,y,y,dp))
    e("  v_add_u32 v%d, %d, v%d" % (cap,63 if HS else 127,tot)); e("  v_and_b32 v%d, %s, v%d" % (cap,"0xffffffc0" if HS else "0xffffff80",cap))
    e("  v_sub_u32 v%d, v%d, v%d" % (y,cap,tot))
    e("  v_cndmask_b32 v%d, 0, v%d, s[58:59]" % (y,y))
    e("  v_add_u32 v%d, v%d, v%d" % (x,x,y))
    e("  v_mov_b32 v%d, v%d" % (y,x))
    for sh in (1,2,4,8):
        e("  s_nop 1"); e("  v_add_u32_dpp v%d, v%d, v%d row_shr:%d %s" % (y,y,y,sh,dp))
    e("  s_nop 1"); e("  v_add_u32_dpp v%d, v%d, v%d row_bcast:15 row_mask:0xa bank_mask:0xf" % (y,y,y))
    e("  s_nop 1"); e("  v_add_u32_dpp v%d, v%d, v%d row_bcast:31 row_mask:0xc bank_mask:0xf" % (y,y,y))
    e("  v_sub_u32 v%d, v%d, v%d" % (y,y,x))
    e("  v_add_u32 v%d, %d, v%d" % (x,SORT,y))
    e("  v_add_u32 v%d, v%d, v%d" % (y,x,c0))
    e("  ds_write_b64 v%d, v[%d:%d] offset:%d" % (vT,x,y,TBL))
    e("  v_add_u32 v%d, v%d, v%d" % (q4,x,tot))
    e("  v_mov_b32 v%d, v%d" % (q4+1,x))
    e("  v_lshrrev_b32 v%d, 3, v%d" % (q4+2,cap))
    e("  v_lshrrev_b32 v%d, %d, v%d" % (cap,6 if HS else 7,cap))
    e("  v_cvt_f32_u32 v%d, v%d" % (y,cap)); e("  v_rcp_f32 v%d, v%d" % (y,y))
    e("  v_mov_b32 v%d, 0x43800000" % tot)
    e("  v_fma_f32 v%d, v%d, v%d, 0.5" % (y,y,tot))
    e("  v_cvt_u32_f32 v%d, v%d" % (y,y))
    e("  v_add_u32 v%d, 1, v%d" % (q4+3,y))
    e("  v_lshlrev_b32 v%d, 2, v%d" % (vT,vL))
    e("  s_lshl_b32 s29, s2, 6"); e("  s_add_u32 s29, s29, %d" % HOFF)
    e("  s_mov_b32 exec_lo, 0x11111111"); e("  s_mov_b32 exec_hi, 0x11111111")
    e("  ds_write_b128 v%d, v[%d:%d] offset:%d" % (vT,q4,q4+3,INFO))
    e("  buffer_store_dword v%d, v%d, s[24:27], s29 offen" % (cap,vL))
    e("  s_mov_b64 exec, -1")
    e("  s_waitcnt lgkmcnt(0)")
    e("P_np:")
    pos1,C1,pos2,C2,b0,b1,vMB,vMr,vL12,d4,dd,vIA=70,71,72,73,74,75,76,77,78,79,80,81
    t1,t2,t3=82,83,84
    e("  v_bfe_u32 v%d, v%d, 4, 1" % (t1,vL))
    e("  v_bfe_u32 v%d, v%d, 2, 2" % (t2,vL))
    e("  v_and_b32 v%d, 3, v%d" % (t3,vL))
    e("  v_lshl_add_u32 v%d, v%d, 2, v%d" % (pos1,t1,t2))
    e("  v_and_b32 v%d, 1, v%d" % (pos2,vL)); e("  v_lshlrev_b32 v%d, 1, v%d" % (pos2,pos2))
    e("  v_lshl_add_u32 v%d, v%d, 2, v%d" % (pos2,t1,pos2))
    e("  v_lshrrev_b32 v%d, 5, v%d" % (t1,vL))
    e("  v_lshlrev_b32 v%d, 3, v%d" % (C1,t1))
    e("  v_lshl_add_u32 v%d, v%d, 4, v%d" % (C2,t2,C1))
    e("  v_lshl_add_u32 v%d, v%d, 4, v%d" % (C1,t3,C1))
    e("  v_bfe_u32 v%d, v%d, 1, 1" % (b0,vL)); e("  v_lshl_add_u32 v%d, v%d, 2, v%d" % (C2,b0,C2))
    e("  v_lshlrev_b32 v%d, 6, v%d" % (vIA,t1))
    e("  s_lshl_b32 s29, s%d, 4" % sW); e("  v_add_u32 v%d, s29, v%d" % (vIA,vIA))
    e("  v_bfe_u32 v%d, v%d, 2, 1" % (b0,vL)); e("  v_lshl_add_u32 v%d, v%d, 4, 15" % (b0,b0))
    e("  v_and_b32 v%d, 8, v%d" % (b1,vL)); e("  v_sub_u32 v%d, v%d, v%d" % (b0,b0,b1))
    e("  v_lshlrev_b32 v%d, 1, v%d" % (t3,t3)); e("  v_sub_u32 v%d, v%d, v%d" % (b0,b0,t3))
    e("  v_lshlrev_b32 v%d, v%d, 1" % (b0,b0)); e("  v_lshrrev_b32 v%d, 1, v%d" % (b1,b0))
    e("  s_lshl_b32 s29, s%d, 8" % sW); e("  s_add_u32 s29, s29, %d" % MSKB)
    e("  v_lshl_add_u32 v%d, v%d, 2, s29" % (vMr,vL))
    e("  v_and_b32 v%d, 0xffffffc0, v%d" % (vMB,vMr))
    e("  v_mul_u32_u24 v%d, 12, v%d" % (vL12,vL))
    e("  v_bfe_u32 v%d, v%d, %s" % (d4,vL,"1, 3" if HS else "2, 3"))
    XA,XV,C1h,C2h=85,86,68,69
    if HS:
        e("  v_and_b32 v%d, 3, v%d" % (XA,vL)); e("  v_lshlrev_b32 v%d, 4, v%d" % (XA,XA))
        e("  v_and_b32 v%d, 12, v%d" % (XV,vL)); e("  v_lshlrev_b32 v%d, 2, v%d" % (XV,XV))
        e("  v_lshl_add_u32 v%d, v%d, 2, v%d" % (C1h,t1,XA)); e("  v_lshl_add_u32 v%d, v%d, 2, v%d" % (C2h,t1,XV))
    e("  v_and_b32 v%d, 31, v%d" % (dd,vL)); e("  v_lshlrev_b32 v%d, 2, v%d" % (dd,dd))
    e("  s_barrier")
    ts(4)
    vTb=52
    def pr(n):
        e("  s_mov_b64 exec, s[%d:%d]" % (32+2*n,33+2*n))
        e("  ds_read_b32 v%d, v%d offset:%d" % (vTb+n,vA+n,TBL))
    i0,i1=20,64
    e("  ds_read_b128 v[%d:%d], v%d offset:%d" % (i0,i0+3,vIA,INFO))
    e("  ds_read_b128 v[%d:%d], v%d offset:%d" % (i1,i1+3,vIA,INFO+128))
    for n in range(8): pr(n)
    e("  s_cmp_eq_u32 s%d, 3" % sW); e("  s_cbranch_scc1 P_b3")
    for n in range(8,12): pr(n)
    e("  s_waitcnt lgkmcnt(0)")
    def pb(n):
        e("  s_mov_b64 exec, s[%d:%d]" % (32+2*n,33+2*n))
        e("  v_add_u32 v%d, v%d, v%d" % (vTb+n,vTb+n,vR+n))
        e("  ds_write_b32 v%d, v%d" % (vTb+n,vI+n))
    for n in range(8,12): pb(n)
    e("P_b3:")
    e("  s_waitcnt lgkmcnt(4)" if False else "  s_waitcnt lgkmcnt(0)")
    for n in range(8): pb(n)
    e("  s_mov_b64 exec, -1")
    e("  s_mov_b32 s28, 256")
    if BS==1: bst()
    for r,ii in enumerate((i0,i1)):
        A,off,S4,M=ii,ii+1,ii+2,ii+3; t=16+r
        e("  v_mad_u32_u24 v%d, v%d, v%d, s28" % (M,d4,M))
        e("  v_lshrrev_b32 v%d, 8, v%d" % (M,M))
        e("  v_add_u32 v%d, v%d, v%d" % (A,A,dd))
        e("  v_mul_u32_u24 v%d, v%d, v%d" % (M,M,S4))
        e("  v_sub_u32 v%d, v%d, v%d" % (M,A,M))
        e("  v_max_i32 v%d, v%d, v%d" % (M,M,off))
        e("  v_lshl_add_u32 v%d, v%d, 3, v%d" % (t,S4,off))
        e("  v_cmp_lt_u32 s[%d:%d], v%d, v%d" % (32+2*r,33+2*r,A,t))
    for j in range(4):
        ii=(i0,i1)[j>>1]
        e("  v_readlane_b32 s%d, v%d, %d" % (40+j,ii+1,32*(j&1)))
        e("  v_readlane_b32 s%d, v%d, %d" % (44+j,ii+2,32*(j&1)))
    e("  s_mul_i32 s48, s2, %d" % (13*768)); e("  s_mul_i32 s29, s%d, 768" % sW); e("  s_add_u32 s48, s48, s29")
    e("  s_mov_b32 s60, 0xffe0ffe0")
    e("  s_waitcnt lgkmcnt(0)")
    e("  s_barrier")
    ts(5)
    for r,ii in enumerate((i0,i1)): e("  ds_read_u16 v%d, v%d" % (16+r,ii+3))
    aj=[(4+3*j,5+3*j,6+3*j) if j else (26,27,28) for j in range(4)]
    aj[1]=(29,30,31); aj[2]=(8,9,10); aj[3]=(11,12,13)
    def adr(j,rem):
        a1,a2,a3=aj[j]; c1,c2=C1,C2
        if HS:
            e("  s_and_b32 s29, s%d, -16" % rem)
            e("  v_cmp_eq_u32 vcc, s29, v%d" % XA); e("  v_cmp_eq_u32 s[58:59], s29, v%d" % XV)
            e("  s_nop 0")
            e("  v_cndmask_b32 v%d, v%d, v%d, vcc" % (a1,C1,C1h)); e("  v_cndmask_b32 v%d, v%d, v%d, s[58:59]" % (a2,C2,C2h))
            c1,c2=a1,a2
        e("  v_mad_u32_u24 v%d, v%d, s%d, v%d" % (a1,pos1,44+j,c1))
        e("  v_mad_u32_u24 v%d, v%d, s%d, v%d" % (a2,pos2,44+j,c2))
        e("  v_add_u32 v%d, s%d, v%d" % (a1,40+j,a1))
        e("  v_add_u32 v%d, s%d, v%d" % (a2,40+j,a2))
        e("  v_add_u32 v%d, s%d, v%d" % (a3,44+j,a2))
    for j in range(4): adr(j,44+j)
    e("  s_waitcnt lgkmcnt(0)")
    for r,ii in enumerate((i0,i1)):
        e("  s_mov_b64 exec, s[%d:%d]" % (32+2*r,33+2*r))
        e("  ds_write_b32 v%d, v%d" % (ii,16+r))
    e("  s_mov_b64 exec, -1")
    def rd(j):
        a1,a2,a3=aj[j]; E=32+2*j; O=40+4*j
        e("  ds_read2_b32 v[%d:%d], v%d offset1:1" % (E,E+1,a1))
        e("  ds_read_u16 v%d, v%d offset:2" % (O+1,a2))
        e("  ds_read_b32 v%d, v%d" % (O+3,a3))
    def cp(j):
        E=32+2*j; O=40+4*j
        e("  v_and_b32 v%d, 15, v%d" % (t1,E)); e("  v_and_b32 v%d, 15, v%d" % (t2,E+1))
        e("  v_lshl_add_u32 v%d, v%d, 2, v%d" % (t1,t1,vMB)); e("  v_lshl_add_u32 v%d, v%d, 2, v%d" % (t2,t2,vMB))
        e("  ds_or_b32 v%d, v%d" % (t1,b0)); e("  ds_or_b32 v%d, v%d" % (t2,b1))
        e("  ds_wrxchg_rtn_b32 v%d, v%d, v%d" % (O+2,vMr,vZ))
        e("  v_perm_b32 v%d, v%d, v%d, s30" % (O,E+1,E))
        e("  v_perm_b32 v%d, v%d, v%d, s31" % (O+1,O+3,O+1))
        e("  v_and_b32 v%d, s60, v%d" % (O,O))
    def st(j,so): e("  buffer_store_dwordx3 v[%d:%d], v%d, s[24:27], s%d offen" % (40+4*j,42+4*j,vL12,so))
    for j in range(4): rd(j)
    if BF in (1,2) and not BS and IM!=2: bst()
    for j in range(3):
        e("  s_waitcnt lgkmcnt(9)")
        cp(j)
    for j in range(1,4): e("  s_add_u32 s%d, s48, %d" % (48+j,j*4*768))
    e("  s_cmp_lg_u32 s%d, 0" % sW)
    e("  s_cbranch_scc1 P_c3")
    e("  s_waitcnt lgkmcnt(9)")
    cp(3)
    if BS!=2:
        e("  s_waitcnt lgkmcnt(0)")
        st(3,51)
    e("P_c3:")
    if BS==2: bst()
    e("  s_waitcnt lgkmcnt(0)")
    for j in range(3): st(j,48+j)
    if BS==2:
        e("  s_cmp_lg_u32 s%d, 0" % sW); e("  s_cbranch_scc1 P_c4"); st(3,51); e("P_c4:")
    if PD:
        ts(6); e("  s_waitcnt vmcnt(0)"); ts(7); e("  s_waitcnt lgkmcnt(0)")
        for n in range(8): e("  v_writelane_b32 v2, s%d, %d" % (62+2*n,n))
        e("  s_lshl_b32 s29, s2, 10"); e("  s_add_u32 s29, s29, %d" % (250<<20))
        e("  v_lshlrev_b32 v0, 2, v0"); e("  buffer_store_dword v2, v0, s[24:27], s29 offen")
    for j in range(4):
        a1,a2,a3=aj[j]
        if j==3: e("  s_cmp_lg_u32 s%d, 0" % sW); e("  s_cbranch_scc1 P_end")
        e("  s_min_u32 s28, s%d, %d" % (44+j,84*16))
        e("P_l%d:" % j)
        e("  s_cmp_le_u32 s28, 64"); e("  s_cbranch_scc1 P_d%d" % j)
        e("  s_sub_u32 s28, s28, 64")
        e("  s_add_u32 s%d, s%d, 64" % (40+j,40+j))
        adr(j,28)
        e("  s_add_u32 s%d, s%d, %d" % (48+j,48+j,BLKS))
        e("  s_waitcnt vmcnt(0)")
        rd(j); e("  s_waitcnt lgkmcnt(0)"); cp(j); e("  s_waitcnt lgkmcnt(0)"); st(j,48+j)
        e("  s_branch P_l%d" % j)
        e("P_d%d:" % j)
    e("P_end:")
    e("  s_endpgm")
```

```python
import os
GRID=1024; LDS=16384; NV=96
RS=int(os.environ.get("RS","1280")); NS=13; TILE=RS*64; PLANE=RS*32
BLKS=1024*13*768; BOFF=224<<20; HOFF=240<<20
MSKB=512; TBL=2048; INFO=2560; SORT=2816
PX=os.environ.get("PX","")
SM=os.environ.get("SM",""); SB=os.environ.get("SB",""); KK=[0]; XM=int(os.environ.get("XM","0")); IM=int(os.environ.get("IM","0")); HS=int(os.environ.get("HS","0")); BM=int(os.environ.get("BM","0")); BS=int(os.environ.get("BS","0")); SH=int(os.environ.get("SH","0")); BF=int(os.environ.get("BF","0"))
def emit(e0,BD):
    def e(l):
        if 'b' in PX and ('s[20:23]' in l or 'buffer_store_dwordx4' in l):
            if 'load' in l: e0("  buffer_load_dword v%d, v%d, s[12:15], 0 offen" % (52,1))
            return
        if 's' in PX and 'buffer_store_dwordx3' in l: return
        if IM and 's[16:19]' in l and not KK[0]==2: return
        if 'buffer_store_dwordx3' in l and SM: l+=' '+SM
        if 'buffer_store_dwordx4' in l and SB: l+=' '+SB
        if BF==2 and l.startswith("  s_waitcnt vmcnt(") and KK[0]: return
        e0(l)
        if 'c' in PX and l=="P_a3:": e0("  s_waitcnt vmcnt(0) lgkmcnt(0)"); e0("  s_endpgm")
    PD=int(os.environ.get("PD","0")); BF=int(os.environ.get("BF","0"))
    def ts(n):
        if PD: e("  s_memrealtime s[%d:%d]" % (62+2*n,63+2*n))
    assert RS%16==0
    vI=8; vV=20; vA=26; vR=38; vB=52; vL=1; vT=2; vU=3; vTm=4; vF=5; vZ=6
    K=823422; K2=(1<<32)//RS+1
    for c in range(16384+256): assert (c*K2)>>32==c//RS
    for s in range(3072): assert (s*K)>>27==s//163
    G=RS//16; KG=(1<<20)//G+1
    for g in range(1024+16): assert (g*KG)>>20==g//G
    sW=3
    e('.globl pre_kernel'); e('.p2align 8'); e('.type pre_kernel,@function'); e('pre_kernel:')
    e("  s_cmp_ge_u32 s2, 1024"); e("  s_cbranch_scc1 P_end")
    ts(0)
    e("  s_load_dwordx4 s[4:7], s[0:1], 0")
    e("  s_load_dwordx2 s[8:9], s[0:1], 16")
    e("  s_load_dwordx2 s[10:11], s[0:1], 40")
    e("  v_lshrrev_b32 v%d, 6, v0" % vT)
    e("  v_and_b32 v%d, 63, v0" % vL)
    e("  v_readfirstlane_b32 s%d, v%d" % (sW,vT))
    sBR,sBC=(65,66) if XM&1 else (2,sW)
    if XM:
        e("  s_and_b32 s66, s2, 3"); e("  s_andn2_b32 s65, s2, 3"); e("  s_or_b32 s65, s65, s%d" % sW)
        if XM&2:
            e("  s_bfe_u32 s28, s2, 0x10002"); e("  s_lshl_b32 s28, s28, 9"); e("  s_lshr_b32 s2, s2, 3"); e("  s_lshl2_add_u32 s2, s2, s66"); e("  s_add_u32 s2, s2, s28")
    e("  v_mov_b32 v%d, 0" % vZ); e("  v_mov_b32 v%d, 0" % (vZ+1))
    e("  v_lshlrev_b32 v%d, 3, v0" % vU)
    e("  ds_write_b64 v%d, v[%d:%d]" % (vU,vZ,vZ+1))
    e("  v_lshlrev_b32 v%d, 4, v0" % vT)
    e("  s_mul_i32 s28, s2, 10432"); e("  s_mul_i32 s29, s2, 5216")
    e("  s_add_u32 s30, s28, 4096"); e("  s_add_u32 s31, s28, 8192")
    e("  s_add_u32 s56, s29, 4096")
    e("  v_cmp_gt_u32 vcc, 140, v0")
    e("  v_bfrev_b32 v%d, 1" % vF)
    e("  s_nop 0")
    e("  v_cndmask_b32 v%d, v%d, v%d, vcc" % (vTm,vF,vU))
    e("  v_cndmask_b32 v%d, v%d, v%d, vcc" % (vF,vF,vT))
    e("  s_waitcnt lgkmcnt(0)")
    for b,lo,n in ((12,4,16384*326),(16,6,16384*652),(20,8,1<<23),(24,10,1<<28)):
        e("  s_mov_b32 s%d, s%d" % (b,lo)); e("  s_mov_b32 s%d, s%d" % (b+1,lo+1))
        e("  s_mov_b32 s%d, %d" % (b+2,n)); e("  s_mov_b32 s%d, 0x20000" % (b+3))
    if BF==3:
        e("  v_lshrrev_b32 v62, 3, v%d" % vL); e("  v_and_b32 v60, 7, v%d" % vL); e("  v_lshlrev_b32 v60, 4, v60"); e("  v_lshl_add_u32 v60, v62, 9, v60")
        e("  s_lshl_b32 s58, s2, 13"); e("  s_lshl_b32 s59, s%d, 7" % sW); e("  s_add_u32 s58, s58, s59"); e("  s_add_u32 s59, s58, 4096")
        e("  buffer_load_dwordx4 v[88:91], v60, s[20:23], s58 offen")
        e("  buffer_load_dwordx4 v[92:95], v60, s[20:23], s59 offen")
    e("  buffer_load_dwordx2 v[%d:%d], v%d, s[12:15], s29 offen" % (vV,vV+1,vU))
    e("  buffer_load_dwordx4 v[%d:%d], v%d, s[16:19], s28 offen" % (vI,vI+3,vT))
    e("  buffer_load_dwordx2 v[%d:%d], v%d, s[12:15], s29 offen offset:2048" % (vV+2,vV+3,vU))
    e("  buffer_load_dwordx4 v[%d:%d], v%d, s[16:19], s30 offen" % (vI+4,vI+7,vT))
    e("  buffer_load_dwordx2 v[%d:%d], v%d, s[12:15], s56 offen" % (vV+4,vV+5,vTm))
    e("  buffer_load_dwordx4 v[%d:%d], v%d, s[16:19], s31 offen" % (vI+8,vI+11,vF))
    if IM: e("  v_mov_b32 v50, v%d" % vT); e("  s_mov_b32 s62, s28"); e("  s_mov_b32 s63, s30"); e("  s_mov_b32 s64, s31")
    vS=60; vD=61
    e("  v_lshrrev_b32 v%d, 3, v%d" % (vT,vL))
    e("  v_and_b32 v%d, 7, v%d" % (vU,vL))
    e("  v_lshlrev_b32 v%d, 4, v%d" % (vS,vU))
    e("  v_lshl_add_u32 v%d, v%d, 9, v%d" % (vS,vT,vS))
    e("  s_lshl_b32 s28, s%d, 13" % sBR); e("  s_lshl_b32 s29, s%d, 7" % sBC); e("  s_add_u32 s28, s28, s29"); e("  s_add_u32 s29, s28, 4096")
    if BF:
        vB=88; vD=87
        e("  s_mov_b32 s61, s28")
    else:
        e("  buffer_load_dwordx4 v[%d:%d], v%d, s[20:23], s28 offen" % (vB,vB+3,vS))
        e("  buffer_load_dwordx4 v[%d:%d], v%d, s[20:23], s29 offen" % (vB+4,vB+7,vS))
    nb=0 if BF else 2
    if BM:
        e("  v_bfe_u32 v%d, v%d, 1, 4" % (vT,vL)); e("  v_lshlrev_b32 v%d, 9, v%d" % (vS,vT))
        e("  v_lshrrev_b32 v%d, 5, v%d" % (vT,vL)); e("  v_lshl_add_u32 v%d, v%d, 5, v%d" % (vS,vT,vS))
        e("  v_and_b32 v%d, 1, v%d" % (vU,vL)); e("  v_lshl_add_u32 v%d, v%d, 4, v%d" % (vS,vU,vS))
    def bld():
        e("  s_add_u32 s29, s61, %d" % (64 if BM else 4096))
        e("  buffer_load_dwordx4 v[%d:%d], v%d, s[20:23], s61 offen" % (vB,vB+3,vS))
        e("  buffer_load_dwordx4 v[%d:%d], v%d, s[20:23], s29 offen" % (vB+4,vB+7,vS))
    def bst(n=0):
        e("  s_waitcnt vmcnt(%d)" % n)
        e("  buffer_store_dwordx4 v[%d:%d], v%d, s[24:27], s57 offen" % (vB,vB+3,vD))
        if BM:
            e("  s_add_u32 s57, s57, %d" % (13*TILE))
            e("  buffer_store_dwordx4 v[%d:%d], v%d, s[24:27], s57 offen" % (vB+4,vB+7,vD))
        else: e("  buffer_store_dwordx4 v[%d:%d], v%d, s[24:27], s57 offen offset:256" % (vB+4,vB+7,vD))
    e("  v_lshlrev_b32 v%d, 5, v%d" % (vD,vT))
    e("  v_and_b32 v%d, 1, v%d" % (vT,vL)); e("  v_lshl_add_u32 v%d, v%d, 4, v%d" % (vD,vT,vD))
    e("  s_mov_b32 s28, %d" % PLANE); e("  s_mov_b32 s29, %d" % (13*TILE))
    e("  v_bfe_u32 v%d, v%d, 1, 1" % (vT,vL)); e("  v_mad_u32_u24 v%d, v%d, s28, v%d" % (vD,vT,vD))
    e("  v_bfe_u32 v%d, v%d, 2, 1" % (vT,vL)); e("  v_mad_u32_u24 v%d, v%d, s29, v%d" % (vD,vT,vD))
    if BM:
        e("  v_and_b32 v%d, 31, v%d" % (vD,vL)); e("  v_lshlrev_b32 v%d, 4, v%d" % (vD,vD))
        e("  v_lshrrev_b32 v%d, 5, v%d" % (vT,vL)); e("  v_mad_u32_u24 v%d, v%d, s28, v%d" % (vD,vT,vD))
    e("  s_add_u32 s29, s%d, %d" % (sBR,16 if SH else 0))
    e("  s_mul_i32 s28, s29, %d" % KG); e("  s_lshr_b32 s28, s28, 20")
    e("  s_mul_i32 s28, s28, %d" % (TILE-G*512)); e("  s_lshl_b32 s29, s29, 9"); e("  s_add_u32 s28, s28, s29")
    e("  s_mul_i32 s29, s%d, %d" % (sBC,26*TILE)); e("  s_add_u32 s28, s28, s29"); e("  s_add_u32 s57, s28, %d" % BOFF)
    e("  v_mul_u32_u24 v%d, %d, v0" % (vTm,4*K))
    e("  v_mov_b32 v%d, 4" % vF)
    e("  s_mov_b32 s28, %d" % ((-RS)&0xffffffff))
    e("  s_mov_b32 s30, 0x05040100"); e("  s_mov_b32 s31, 0x07060100")
    e("  s_barrier")
    if BF==3: bst(6)
    def mk(k,i): return 32+2*(4*k+i)
    def cmps(k):
        for i in range(4):
            e("  v_cmp_neq_f16_sdwa s[%d:%d], v%d, v%d src0_sel:WORD_%d src1_sel:DWORD" % (mk(k,i),mk(k,i)+1,vV+2*k+(i>>1),vZ,i&1))
    if IM:
        KK[0]=2
        if IM==2: bld()
        for k in range(3):
            e("  s_waitcnt vmcnt(%d)" % (4 if IM==2 else 2))
            cmps(k)
            e("  s_or_b64 s[58:59], s[%d:%d], s[%d:%d]" % (mk(k,0),mk(k,0)+1,mk(k,1),mk(k,1)+1))
            e("  s_or_b64 exec, s[%d:%d], s[%d:%d]" % (mk(k,2),mk(k,2)+1,mk(k,3),mk(k,3)+1))
            e("  s_or_b64 exec, exec, s[58:59]")
            e("  buffer_load_dwordx4 v[%d:%d], v50, s[16:19], s%d offen" % (vI+4*k,vI+4*k+3,62+k))
            e("  s_mov_b64 exec, -1")
        if IM==2: bst(3)
        if IM==3: bld()
    for k in range(3):
        KK[0]=(k==2)
        if k==2: e("  s_cmp_eq_u32 s%d, 3" % sW); e("  s_cbranch_scc1 P_a3")
        if IM: e("  s_waitcnt vmcnt(%d)" % (2-k+(2 if IM==3 else 0)))
        else:
            e("  s_waitcnt vmcnt(%d)" % (5+nb-2*k))
            cmps(k)
            e("  s_waitcnt vmcnt(%d)" % (4+nb-2*k))
        if BF==2 and k==1: e("  s_waitcnt vmcnt(0)"); bld()
        if k==0: ts(1)
        for i in range(4):
            c=vI+4*k+i; a=vA+4*k+i
            e("  s_mov_b64 exec, s[%d:%d]" % (mk(k,i),mk(k,i)+1))
            if SH: e("  v_add_u32 v%d, 256, v%d" % (c,c))
            e("  v_mul_hi_u32_u24 v%d, %d, v%d" % (vT,K2,c))
            e("  v_lshlrev_b32 v%d, 29, v%d" % (vU,c))
            e("  v_alignbit_b32 v%d, v%d, v%d, 27" % (a,vT,vU))
            e("  ds_add_rtn_u32 v%d, v%d, v%d" % (vR+4*k+i,a,vF))
            e("  v_mad_i32_i24 v%d, v%d, s28, v%d" % (c,vT,c))
            e("  v_add_u32 v%d, %d, v%d" % (vU,(1024*k+i)*K,vTm))
            e("  v_alignbit_b32 v%d, v%d, v%d, 27" % (c,c,vU))
            e("  v_perm_b32 v%d, v%d, v%d, s%d" % (c,vV+2*k+(i>>1),c,30+(i&1)))
        e("  s_mov_b64 exec, -1")
    KK[0]=0
    e("P_a3:")
    ts(2)
    if BF==1 and IM<2: bld()
    if not BF: bst()
    e("  s_cmp_lg_u32 s%d, 0" % sW)
    e("  s_waitcnt lgkmcnt(0)")
    e("  s_barrier")
    ts(3)
    e("  s_cbranch_scc1 P_np")
    c0,c1,x,y,tot,cap=62,63,64,65,66,67; q4=68
    dp="row_mask:0xf bank_mask:0xf"
    e("  v_lshlrev_b32 v%d, 3, v%d" % (vT,vL))
    e("  ds_read_b64 v[%d:%d], v%d" % (c0,c1,vT))
    e("  s_mov_b32 s58, 0x88888888"); e("  s_mov_b32 s59, s58")
    e("  s_waitcnt lgkmcnt(0)")
    e("  v_add_u32 v%d, v%d, v%d" % (x,c0,c1)); e("  s_nop 1")
    e("  v_add_u32_dpp v%d, v%d, v%d quad_perm:[1,0,3,2] %s" % (y,x,x,dp)); e("  s_nop 1")
    e("  v_add_u32_dpp v%d, v%d, v%d quad_perm:[2,3,0,1] %s" % (tot,y,y,dp))
    e("  v_add_u32 v%d, %d, v%d" % (cap,63 if HS else 127,tot)); e("  v_and_b32 v%d, %s, v%d" % (cap,"0xffffffc0" if HS else "0xffffff80",cap))
    e("  v_sub_u32 v%d, v%d, v%d" % (y,cap,tot))
    e("  v_cndmask_b32 v%d, 0, v%d, s[58:59]" % (y,y))
    e("  v_add_u32 v%d, v%d, v%d" % (x,x,y))
    e("  v_mov_b32 v%d, v%d" % (y,x))
    for sh in (1,2,4,8):
        e("  s_nop 1"); e("  v_add_u32_dpp v%d, v%d, v%d row_shr:%d %s" % (y,y,y,sh,dp))
    e("  s_nop 1"); e("  v_add_u32_dpp v%d, v%d, v%d row_bcast:15 row_mask:0xa bank_mask:0xf" % (y,y,y))
    e("  s_nop 1"); e("  v_add_u32_dpp v%d, v%d, v%d row_bcast:31 row_mask:0xc bank_mask:0xf" % (y,y,y))
    e("  v_sub_u32 v%d, v%d, v%d" % (y,y,x))
    e("  v_add_u32 v%d, %d, v%d" % (x,SORT,y))
    e("  v_add_u32 v%d, v%d, v%d" % (y,x,c0))
    e("  ds_write_b64 v%d, v[%d:%d] offset:%d" % (vT,x,y,TBL))
    e("  v_add_u32 v%d, v%d, v%d" % (q4,x,tot))
    e("  v_mov_b32 v%d, v%d" % (q4+1,x))
    e("  v_lshrrev_b32 v%d, 3, v%d" % (q4+2,cap))
    e("  v_lshrrev_b32 v%d, %d, v%d" % (cap,6 if HS else 7,cap))
    e("  v_cvt_f32_u32 v%d, v%d" % (y,cap)); e("  v_rcp_f32 v%d, v%d" % (y,y))
    e("  v_mov_b32 v%d, 0x43800000" % tot)
    e("  v_fma_f32 v%d, v%d, v%d, 0.5" % (y,y,tot))
    e("  v_cvt_u32_f32 v%d, v%d" % (y,y))
    e("  v_add_u32 v%d, 1, v%d" % (q4+3,y))
    e("  v_lshlrev_b32 v%d, 2, v%d" % (vT,vL))
    e("  s_lshl_b32 s29, s2, 6"); e("  s_add_u32 s29, s29, %d" % HOFF)
    e("  s_mov_b32 exec_lo, 0x11111111"); e("  s_mov_b32 exec_hi, 0x11111111")
    e("  ds_write_b128 v%d, v[%d:%d] offset:%d" % (vT,q4,q4+3,INFO))
    e("  buffer_store_dword v%d, v%d, s[24:27], s29 offen" % (cap,vL))
    e("  s_mov_b64 exec, -1")
    e("  s_waitcnt lgkmcnt(0)")
    e("P_np:")
    pos1,C1,pos2,C2,b0,b1,vMB,vMr,vL12,d4,dd,vIA=70,71,72,73,74,75,76,77,78,79,80,81
    t1,t2,t3=82,83,84
    e("  v_bfe_u32 v%d, v%d, 4, 1" % (t1,vL))
    e("  v_bfe_u32 v%d, v%d, 2, 2" % (t2,vL))
    e("  v_and_b32 v%d, 3, v%d" % (t3,vL))
    e("  v_lshl_add_u32 v%d, v%d, 2, v%d" % (pos1,t1,t2))
    e("  v_and_b32 v%d, 1, v%d" % (pos2,vL)); e("  v_lshlrev_b32 v%d, 1, v%d" % (pos2,pos2))
    e("  v_lshl_add_u32 v%d, v%d, 2, v%d" % (pos2,t1,pos2))
    e("  v_lshrrev_b32 v%d, 5, v%d" % (t1,vL))
    e("  v_lshlrev_b32 v%d, 3, v%d" % (C1,t1))
    e("  v_lshl_add_u32 v%d, v%d, 4, v%d" % (C2,t2,C1))
    e("  v_lshl_add_u32 v%d, v%d, 4, v%d" % (C1,t3,C1))
    e("  v_bfe_u32 v%d, v%d, 1, 1" % (b0,vL)); e("  v_lshl_add_u32 v%d, v%d, 2, v%d" % (C2,b0,C2))
    e("  v_lshlrev_b32 v%d, 6, v%d" % (vIA,t1))
    e("  s_lshl_b32 s29, s%d, 4" % sW); e("  v_add_u32 v%d, s29, v%d" % (vIA,vIA))
    e("  v_bfe_u32 v%d, v%d, 2, 1" % (b0,vL)); e("  v_lshl_add_u32 v%d, v%d, 4, 15" % (b0,b0))
    e("  v_and_b32 v%d, 8, v%d" % (b1,vL)); e("  v_sub_u32 v%d, v%d, v%d" % (b0,b0,b1))
    e("  v_lshlrev_b32 v%d, 1, v%d" % (t3,t3)); e("  v_sub_u32 v%d, v%d, v%d" % (b0,b0,t3))
    e("  v_lshlrev_b32 v%d, v%d, 1" % (b0,b0)); e("  v_lshrrev_b32 v%d, 1, v%d" % (b1,b0))
    e("  s_lshl_b32 s29, s%d, 8" % sW); e("  s_add_u32 s29, s29, %d" % MSKB)
    e("  v_lshl_add_u32 v%d, v%d, 2, s29" % (vMr,vL))
    e("  v_and_b32 v%d, 0xffffffc0, v%d" % (vMB,vMr))
    e("  v_mul_u32_u24 v%d, 12, v%d" % (vL12,vL))
    e("  v_bfe_u32 v%d, v%d, %s" % (d4,vL,"1, 3" if HS else "2, 3"))
    XA,XV,C1h,C2h=85,86,68,69
    if HS:
        e("  v_and_b32 v%d, 3, v%d" % (XA,vL)); e("  v_lshlrev_b32 v%d, 4, v%d" % (XA,XA))
        e("  v_and_b32 v%d, 12, v%d" % (XV,vL)); e("  v_lshlrev_b32 v%d, 2, v%d" % (XV,XV))
        e("  v_lshl_add_u32 v%d, v%d, 2, v%d" % (C1h,t1,XA)); e("  v_lshl_add_u32 v%d, v%d, 2, v%d" % (C2h,t1,XV))
    e("  v_and_b32 v%d, 31, v%d" % (dd,vL)); e("  v_lshlrev_b32 v%d, 2, v%d" % (dd,dd))
    e("  s_barrier")
    ts(4)
    vTb=52
    def pr(n):
        e("  s_mov_b64 exec, s[%d:%d]" % (32+2*n,33+2*n))
        e("  ds_read_b32 v%d, v%d offset:%d" % (vTb+n,vA+n,TBL))
    i0,i1=20,64
    e("  ds_read_b128 v[%d:%d], v%d offset:%d" % (i0,i0+3,vIA,INFO))
    e("  ds_read_b128 v[%d:%d], v%d offset:%d" % (i1,i1+3,vIA,INFO+128))
    for n in range(8): pr(n)
    e("  s_cmp_eq_u32 s%d, 3" % sW); e("  s_cbranch_scc1 P_b3")
    for n in range(8,12): pr(n)
    e("  s_waitcnt lgkmcnt(0)")
    def pb(n):
        e("  s_mov_b64 exec, s[%d:%d]" % (32+2*n,33+2*n))
        e("  v_add_u32 v%d, v%d, v%d" % (vTb+n,vTb+n,vR+n))
        e("  ds_write_b32 v%d, v%d" % (vTb+n,vI+n))
    for n in range(8,12): pb(n)
    e("P_b3:")
    e("  s_waitcnt lgkmcnt(4)" if False else "  s_waitcnt lgkmcnt(0)")
    for n in range(8): pb(n)
    e("  s_mov_b64 exec, -1")
    e("  s_mov_b32 s28, 256")
    if BS==1: bst()
    for r,ii in enumerate((i0,i1)):
        A,off,S4,M=ii,ii+1,ii+2,ii+3; t=16+r
        e("  v_mad_u32_u24 v%d, v%d, v%d, s28" % (M,d4,M))
        e("  v_lshrrev_b32 v%d, 8, v%d" % (M,M))
        e("  v_add_u32 v%d, v%d, v%d" % (A,A,dd))
        e("  v_mul_u32_u24 v%d, v%d, v%d" % (M,M,S4))
        e("  v_sub_u32 v%d, v%d, v%d" % (M,A,M))
        e("  v_max_i32 v%d, v%d, v%d" % (M,M,off))
        e("  v_lshl_add_u32 v%d, v%d, 3, v%d" % (t,S4,off))
        e("  v_cmp_lt_u32 s[%d:%d], v%d, v%d" % (32+2*r,33+2*r,A,t))
    for j in range(4):
        ii=(i0,i1)[j>>1]
        e("  v_readlane_b32 s%d, v%d, %d" % (40+j,ii+1,32*(j&1)))
        e("  v_readlane_b32 s%d, v%d, %d" % (44+j,ii+2,32*(j&1)))
    e("  s_mul_i32 s48, s2, %d" % (13*768)); e("  s_mul_i32 s29, s%d, 768" % sW); e("  s_add_u32 s48, s48, s29")
    e("  s_mov_b32 s60, 0xffe0ffe0")
    e("  s_waitcnt lgkmcnt(0)")
    e("  s_barrier")
    ts(5)
    for r,ii in enumerate((i0,i1)): e("  ds_read_u16 v%d, v%d" % (16+r,ii+3))
    aj=[(4+3*j,5+3*j,6+3*j) if j else (26,27,28) for j in range(4)]
    aj[1]=(29,30,31); aj[2]=(8,9,10); aj[3]=(11,12,13)
    def adr(j,rem):
        a1,a2,a3=aj[j]; c1,c2=C1,C2
        if HS:
            e("  s_and_b32 s29, s%d, -16" % rem)
            e("  v_cmp_eq_u32 vcc, s29, v%d" % XA); e("  v_cmp_eq_u32 s[58:59], s29, v%d" % XV)
            e("  s_nop 0")
            e("  v_cndmask_b32 v%d, v%d, v%d, vcc" % (a1,C1,C1h)); e("  v_cndmask_b32 v%d, v%d, v%d, s[58:59]" % (a2,C2,C2h))
            c1,c2=a1,a2
        e("  v_mad_u32_u24 v%d, v%d, s%d, v%d" % (a1,pos1,44+j,c1))
        e("  v_mad_u32_u24 v%d, v%d, s%d, v%d" % (a2,pos2,44+j,c2))
        e("  v_add_u32 v%d, s%d, v%d" % (a1,40+j,a1))
        e("  v_add_u32 v%d, s%d, v%d" % (a2,40+j,a2))
        e("  v_add_u32 v%d, s%d, v%d" % (a3,44+j,a2))
    for j in range(4): adr(j,44+j)
    e("  s_waitcnt lgkmcnt(0)")
    for r,ii in enumerate((i0,i1)):
        e("  s_mov_b64 exec, s[%d:%d]" % (32+2*r,33+2*r))
        e("  ds_write_b32 v%d, v%d" % (ii,16+r))
    e("  s_mov_b64 exec, -1")
    def rd(j):
        a1,a2,a3=aj[j]; E=32+2*j; O=40+4*j
        e("  ds_read2_b32 v[%d:%d], v%d offset1:1" % (E,E+1,a1))
        e("  ds_read_u16 v%d, v%d offset:2" % (O+1,a2))
        e("  ds_read_b32 v%d, v%d" % (O+3,a3))
    def cp(j):
        E=32+2*j; O=40+4*j
        e("  v_and_b32 v%d, 15, v%d" % (t1,E)); e("  v_and_b32 v%d, 15, v%d" % (t2,E+1))
        e("  v_lshl_add_u32 v%d, v%d, 2, v%d" % (t1,t1,vMB)); e("  v_lshl_add_u32 v%d, v%d, 2, v%d" % (t2,t2,vMB))
        e("  ds_or_b32 v%d, v%d" % (t1,b0)); e("  ds_or_b32 v%d, v%d" % (t2,b1))
        e("  ds_wrxchg_rtn_b32 v%d, v%d, v%d" % (O+2,vMr,vZ))
        e("  v_perm_b32 v%d, v%d, v%d, s30" % (O,E+1,E))
        e("  v_perm_b32 v%d, v%d, v%d, s31" % (O+1,O+3,O+1))
        e("  v_and_b32 v%d, s60, v%d" % (O,O))
    def st(j,so): e("  buffer_store_dwordx3 v[%d:%d], v%d, s[24:27], s%d offen" % (40+4*j,42+4*j,vL12,so))
    for j in range(4): rd(j)
    if BF in (1,2) and not BS and IM!=2: bst()
    for j in range(3):
        e("  s_waitcnt lgkmcnt(9)")
        cp(j)
    for j in range(1,4): e("  s_add_u32 s%d, s48, %d" % (48+j,j*4*768))
    e("  s_cmp_lg_u32 s%d, 0" % sW)
    e("  s_cbranch_scc1 P_c3")
    e("  s_waitcnt lgkmcnt(9)")
    cp(3)
    if BS!=2:
        e("  s_waitcnt lgkmcnt(0)")
        st(3,51)
    e("P_c3:")
    if BS==2: bst()
    e("  s_waitcnt lgkmcnt(0)")
    for j in range(3): st(j,48+j)
    if BS==2:
        e("  s_cmp_lg_u32 s%d, 0" % sW); e("  s_cbranch_scc1 P_c4"); st(3,51); e("P_c4:")
    if PD:
        ts(6); e("  s_waitcnt vmcnt(0)"); ts(7); e("  s_waitcnt lgkmcnt(0)")
        for n in range(8): e("  v_writelane_b32 v2, s%d, %d" % (62+2*n,n))
        e("  s_lshl_b32 s29, s2, 10"); e("  s_add_u32 s29, s29, %d" % (250<<20))
        e("  v_lshlrev_b32 v0, 2, v0"); e("  buffer_store_dword v2, v0, s[24:27], s29 offen")
    for j in range(4):
        a1,a2,a3=aj[j]
        if j==3: e("  s_cmp_lg_u32 s%d, 0" % sW); e("  s_cbranch_scc1 P_end")
        e("  s_min_u32 s28, s%d, %d" % (44+j,84*16))
        e("P_l%d:" % j)
        e("  s_cmp_le_u32 s28, 64"); e("  s_cbranch_scc1 P_d%d" % j)
        e("  s_sub_u32 s28, s28, 64")
        e("  s_add_u32 s%d, s%d, 64" % (40+j,40+j))
        adr(j,28)
        e("  s_add_u32 s%d, s%d, %d" % (48+j,48+j,BLKS))
        e("  s_waitcnt vmcnt(0)")
        rd(j); e("  s_waitcnt lgkmcnt(0)"); cp(j); e("  s_waitcnt lgkmcnt(0)"); st(j,48+j)
        e("  s_branch P_l%d" % j)
        e("P_d%d:" % j)
    e("P_end:")
    e("  s_endpgm")
```

```python
import sys, os
NAME = "standalone__sparse_matmul_formats_ell__sparse_mat"
BD   = int(os.environ.get("BD","0"))
PRE  = int(os.environ.get("PRE","0"))
ASHR = os.environ.get("ASHR","pk")
NOMM = int(os.environ.get("NOMM","0"))
NODMA= int(os.environ.get("NODMA","0"))
NOSTR=int(os.environ.get("NOSTR","0"))
NOBAR=int(os.environ.get("NOBAR","0"))
NORD=int(os.environ.get("NORD","0"))
DIAG=int(os.environ.get('DIAG','0'))
def ts(lane):
    if not DIAG: return
    e('  s_memrealtime s[40:41]'); e('  s_waitcnt lgkmcnt(0)')
    if isinstance(lane,int): e('  v_writelane_b32 v%d, s40, %d' % (vTS,lane))
    else:
        e('  s_mov_b32 s42, m0'); e('  s_add_u32 m0, %s' % lane); e('  s_nop 0'); e('  v_writelane_b32 v%d, s40, m0' % vTS); e('  s_mov_b32 m0, s42')
HS=int(os.environ.get('HS','0')); FB=8 if HS else 4
NS=13; RS=1280; TILE=81920; PLANE=40960
BLKS=1024*13*768; BOFF=224<<20; HOFF=240<<20
o=[]
def e(s): o.append(s)
HDR = open('cdna_kernels/%s.s.ref' % NAME).read().split('\n')
for l in HDR[:8]:
    if l.startswith('; Override') or l.startswith('; @launch'): break
    e(l)
if PRE:
    import gen_pre
    e("; @launch kernel=pre_kernel grid=(%d,1,1) block=(256,1,1) lds=%d" % (gen_pre.GRID, gen_pre.LDS))
    e("; @launch kernel=%s_kernel grid=(256,1,1) block=(1024,1,1) lds=163840" % NAME)
else:
    e("; @launch grid=(256,1,1) block=(1024,1,1) lds=163840")
e('.amdgcn_target "amdgcn-amd-amdhsa--gfx950"')
e('.text')
e('.globl %s_kernel' % NAME)
e('.p2align 8')
e('.type %s_kernel,@function' % NAME)
e('%s_kernel:' % NAME)
GR='abc'
PRIO=int(os.environ.get('PRIO','1'))
ACC={'a':4,'b':12,'c':20}
CUR={'a':(28,52),'b':(32,56),'c':(36,60)}
NXT={'a':(40,64),'b':(44,68),'c':(48,72)}
vLB,vSO,vCNT,vL,vT,vDO=55,59,63,67,71,75
vA=(76,80); vB=84; vAD=76; vS=116; vK4=120; vQ=120; vM0=2
vTS=1
NV=124
sP,sSO,sDO,sM,sBk,sT,sT2,sCS,sRG,sW=16,17,18,19,24,25,26,27,28,29
sN={'a':20,'b':21,'c':22}; sNN={'a':44,'b':45,'c':46}
GOFF={'a':0,'b':12*13*768,'c':24*13*768}
e("  s_cmp_ge_u32 s2, 256")
e("  s_cbranch_scc1 L_end")
ts(0)
e("  s_load_dwordx2 s[34:35], s[0:1], 24")
e("  s_load_dwordx2 s[36:37], s[0:1], 40")
e("  v_lshrrev_b32 v%d, 6, v0" % vT)
e("  v_and_b32 v%d, 63, v0" % vL)
e("  v_readfirstlane_b32 s%d, v%d" % (sW,vT))
e("  s_and_b32 s%d, s2, 3" % sCS)
e("  s_lshl_b32 s%d, s%d, 1" % (sCS,sCS))
e("  s_bfe_u32 s3, s2, 0x10003")
e("  s_add_u32 s%d, s%d, s3" % (sCS,sCS))
e("  s_bfe_u32 s%d, s2, 0x10002" % sRG)
e("  s_lshl_b32 s%d, s%d, 4" % (sRG,sRG))
e("  s_lshr_b32 s3, s2, 4")
e("  s_add_u32 s%d, s%d, s3" % (sRG,sRG))
e("  s_lshl_b32 s%d, s%d, 5" % (sRG,sRG))
e("  s_add_u32 s%d, s%d, s%d" % (sRG,sRG,sW))
e("  s_mul_i32 s%d, s%d, %d" % (sSO,sRG,13*768))
e("  s_lshl_b32 s%d, s%d, 6" % (sT2,sRG))
e("  s_add_u32 s%d, s%d, %d" % (sT2,sT2,HOFF))
e("  v_lshrrev_b32 v%d, 4, v%d" % (vT,vL))
e("  v_mul_u32_u24 v%d, %d, v%d" % (vT,12*64-64,vT))
e("  v_lshl_add_u32 v%d, v%d, 2, v%d" % (vT,vL,vT))
e("  v_mul_u32_u24 v%d, 12, v%d" % (vSO,vL))
e("  v_and_b32 v%d, 3, v%d" % (vLB,vL))
e("  v_lshlrev_b32 v%d, 3, v%d" % (vLB,vLB))
SH=int(os.environ.get("SH","0")); SO=os.environ.get("SO","")
if SH:
    e("  s_lshr_b32 s3, s%d, 3" % sW); e("  s_mul_i32 s3, s3, %d" % (PLANE-8*4096)); e("  s_lshl_b32 s%d, s%d, 12" % (sM,sW))
    e("  s_add_u32 s%d, s%d, s3" % (sM,sM)); e("  s_add_u32 s%d, s%d, 8192" % (sM,sM))
else: e("  s_mul_i32 s%d, s%d, 5120" % (sM,sW))
e("  v_lshlrev_b32 v%d, 4, v%d" % (vDO,vL))
e("  s_mul_i32 s%d, s%d, %d" % (sDO,sCS,13*TILE))
e("  s_add_u32 s%d, s%d, %d" % (sDO,sDO,BOFF))
e("  s_add_u32 s3, s%d, s%d" % (sDO,sM))
e("  s_waitcnt lgkmcnt(0)")
e("  s_mov_b32 s4, s36"); e("  s_mov_b32 s5, s37"); e("  s_mov_b32 s6, 0x10000000"); e("  s_mov_b32 s7, 0x20000")
e("  s_mov_b32 s8, s34"); e("  s_mov_b32 s9, s35"); e("  s_mov_b32 s10, 0x800000"); e("  s_mov_b32 s11, 0x20000")
ts(1)
e("  s_mov_b32 m0, s%d" % sM)
e("  s_add_u32 s%d, s3, 4096" % sT)
for i in range(4): e("  buffer_load_dwordx4 v%d, s[4:7], s3 offen offset:%d lds" % (vDO,i*1024))
e("  s_add_u32 m0, s%d, 4096" % sM)
e("  s_cmp_lt_u32 s%d, 12" % sW)
if not SH: e("  buffer_load_dwordx4 v%d, s[4:7], s%d offen lds" % (vDO,sT))
e("  s_cbranch_scc1 L_comp")
e("  s_sub_u32 s%d, s%d, 12" % (sW,sW))
e("  s_mul_i32 s%d, s%d, 20480" % (sM,sW))
e("  s_add_u32 s%d, s%d, s%d" % (sDO,sDO,sM))
e("  s_add_u32 s30, s%d, %d" % (sM,TILE))
e("  s_xor_b32 s30, s30, s%d" % sM)
RST=int(os.environ.get("RST","0")); LPR=int(os.environ.get("LPR","3")); AO=int(os.environ.get("AO","0"))
if RST:
  vR=4
  def lds_():
    e("  s_add_u32 s%d, s%d, %d" % (sDO,sDO,TILE))
    for k in range(5):
      e("  s_add_u32 s%d, s%d, %d" % (sT,sDO,k*4096))
      for i in range(4): e("  buffer_load_dwordx4 v[%d:%d], v%d, s[4:7], s%d offen offset:%d" % (vR+16*k+4*i,vR+16*k+4*i+3,vDO2,sT,i*1024))
  vDO2=88; vWA=89
  e("  s_setprio %d" % LPR)
  e("  v_mov_b32 v%d, v%d" % (vDO2,vDO))
  e("  v_add_u32 v%d, s%d, v%d" % (vWA,sM,vDO))
  lds_()
  e("  s_mov_b32 s%d, 1" % sP)
  e("  s_waitcnt vmcnt(20)")
  e("  s_barrier")
  e("L_load:")
  e("  v_xor_b32 v%d, s30, v%d" % (vWA,vWA))
  for n in range(20):
    e("  s_waitcnt vmcnt(%d)" % (19-n))
    if not NODMA: e("  ds_write_b128 v%d, v[%d:%d] offset:%d" % (vWA,vR+4*n,vR+4*n+3,n*1024))
  e("  s_add_u32 s%d, s%d, 1" % (sP,sP))
  e("  s_cmp_ge_u32 s%d, %d" % (sP,NS))
  e("  s_waitcnt lgkmcnt(0)")
  e("  s_cbranch_scc1 L_lend")
  lds_()
  e("  s_barrier")
  e("  s_branch L_load")
  e("L_lend:")
  e("  s_barrier")
  e("  s_branch L_fin")
else:
  T1=int(os.environ.get("T1","0"))
  def dma():
    e("  s_xor_b32 s%d, s%d, s30" % (sM,sM))
    e("  s_add_u32 s%d, s%d, %d" % (sDO,sDO,TILE))
    for k in range(0 if NODMA else 5):
      e("  s_add_u32 m0, s%d, %d" % (sM,k*4096))
      e("  s_add_u32 s%d, s%d, %d" % (sT,sDO,k*4096))
      for i in range(4): e("  buffer_load_dwordx4 v%d, s[4:7], s%d offen offset:%d lds" % (vDO,sT,i*1024))
  e("  s_mov_b32 s%d, 1" % sP)
  if T1:
    if T1>1: e("  s_waitcnt vmcnt(%d)" % (T1-2))
    dma(); e("  s_waitcnt vmcnt(20)"); e("  s_barrier"); e("  s_branch L_ld2")
  else:
    e("  s_waitcnt vmcnt(0)")
    e("  s_barrier")
  e("L_load:")
  dma()
  e("L_ld2:")
  e("  s_add_u32 s%d, s%d, 1" % (sP,sP))
  e("  s_cmp_lt_u32 s%d, %d" % (sP,NS))
  e("  s_waitcnt vmcnt(0)")
  ts("s16, 30")
  e("  s_barrier")
  e("  s_cbranch_scc1 L_load")
  e("  s_branch L_fin")
e("L_comp:")
if PRIO: e("  s_setprio %d" % PRIO)
e("  buffer_load_dword v%d, v%d, s[4:7], s%d offen" % (vCNT,vT,sT2))
def ld(r,so): e("  buffer_load_dwordx3 v[%d:%d], v%d, s[4:7], s%d offen" % (r,r+2,vSO,so))
def stream(tag, first):
    if NOSTR and not first:
        for X in GR: e("  s_mov_b32 s%d, %s" % (sNN[X], '4' if X!='c' else 's47'))
        return
    if not first:
        for k,X in enumerate(GR):
            if k: e("  s_add_u32 s%d, s%d, %d" % (sT,sP,16*k))
            e("  v_readlane_b32 s%d, v%d, s%d" % (sNN[X],vCNT,sT if k else sP))
    for X in GR:
        if X=='c':
            e("  s_cmp_ge_u32 s%d, 8" % sW); e("  s_cbranch_scc1 L_noc%s" % tag)
        e("  s_add_u32 s%d, s%d, %d" % (sT,sSO,GOFF[X]))
        ld(NXT[X][0],sT)
        if not first:
            e("  s_cmp_le_u32 s%d, 4" % sNN[X])
            e("  s_cbranch_scc1 L_ns%s%s" % (X,tag))
        e("  s_add_u32 s%d, s%d, %d" % (sT,sT,BLKS))
        ld(NXT[X][1],sT)
        e("L_ns%s%s:" % (X,tag))
    e("L_noc%s:" % tag)
    e("  s_add_u32 s%d, s%d, 768" % (sSO,sSO))
e("  s_mov_b32 s%d, 0" % sP)
stream('0',True)
for X in GR:
    for i in range(8): e("  v_mov_b32 v%d, 0" % (ACC[X]+i))
e("  s_cmp_ge_u32 s%d, 8" % sW)
e("  s_cselect_b32 s47, 0, 4")
e("  s_cselect_b32 s3, 32, 64")
e("  v_cmp_gt_u32 vcc, s3, v%d" % vL)
e("  s_waitcnt vmcnt(0)")
e("  s_nop 0")
e("  v_cndmask_b32 v%d, 0, v%d, vcc" % (vCNT,vCNT))
e("  v_min_u32 v%d, %d, v%d" % (vCNT,21*FB,vCNT))
e("  s_nop 1")
for k,X in enumerate(GR): e("  v_readlane_b32 s%d, v%d, %d" % (sNN[X],vCNT,16*k))
ts(2)
if not int(os.environ.get("EARLY","1")): e("  s_barrier")
def abuild(W,x,A,nh=2):
    ops=[]
    srcs=[]
    for ih in range(nh):
        p=2*x+ih; src=W+2
        if p: ops.append("  v_lshlrev_b64 v[%d:%d], %d, v[%d:%d]" % (vS+2*ih,vS+2*ih+1,p,W+2,W+3)); src=vS+2*ih
        srcs+= [src,src+1]
    for i in range(2*nh): ops.append("  v_pk_ashrrev_i16 v%d, 15, v%d op_sel_hi:[0,1]" % (vK4+i,srcs[i]))
    for i in range(2*nh): ops.append("  v_and_b32_dpp v%d, v%d, v%d row_newbcast:%d row_mask:0xf bank_mask:0xf" % (A+i,W+1,vK4+i,4*x+i))
    return [] if NOMM else ops
def block(W,acc,f,hf=0):
    n=f+hf
    nh=lambda x: 2 if x<f else 1
    if f: e("  v_lshrrev_b32 v%d, 16, v%d" % (vQ+1,W))
    e("  v_and_b32 v%d, 0xffff, v%d" % (vQ,W))
    e("  v_lshlrev_b32 v%d, 8, v%d" % (W+3,W+2))
    e("  s_nop 0")
    for x in range(n):
        a=vAD+2*x
        for h in range(nh(x)):
            e("  v_add_u32_dpp v%d, v%d, v%d quad_perm:[%d,%d,%d,%d] row_mask:0xf bank_mask:0xf" % (a+h,vQ+h,vLB,x,x,x,x))
        for q in ((0,1,2,3) if x<f else (0,2)): e("  ds_read_b64_tr_b16 v[%d:%d], v%d offset:%d" % (vB+8*x+2*q,vB+8*x+2*q+1,a+(q&1),PLANE*(q>>1)))
    for op in abuild(W,0,vA[0],nh(0)): e(op)
    for x in range(n):
        A=vA[x&1]
        nx = abuild(W,x+1,vA[(x+1)&1],nh(x+1)) if x+1<n else []
        c=(len(nx)+1)//2
        after=sum(2*nh(y) for y in range(x+1,n))
        for op in nx[:c]: e(op)
        e("  s_waitcnt lgkmcnt(%d)" % (after+nh(x)))
        if not nx: e("  s_nop 0")
        m="v_mfma_f32_16x16x32_bf16" if x<f else "v_mfma_f32_16x16x16_bf16"; r=2*nh(x)-1
        e("  %s v[%d:%d], v[%d:%d], v[%d:%d], v[%d:%d]" % (m,acc,acc+3,vB+8*x,vB+8*x+r,A,A+r,acc,acc+3))
        for op in nx[c:]: e(op)
        e("  s_waitcnt lgkmcnt(%d)" % after)
        e("  %s v[%d:%d], v[%d:%d], v[%d:%d], v[%d:%d]" % (m,acc+4,acc+7,vB+8*x+4,vB+8*x+4+r,A,A+r,acc+4,acc+7))
EARLY=int(os.environ.get("EARLY","1"))
def pre(t):
    global CUR,NXT
    CUR,NXT = NXT,CUR
    for X in GR: e("  s_mov_b32 s%d, s%d" % (sN[X],sNN[X]))
    e("  s_add_u32 s%d, s%d, 1" % (sP,sP))
    e("  s_mov_b32 s31, s%d" % sSO)
    e("  s_cmp_ge_u32 s%d, %d" % (sP,NS))
    e("  s_cbranch_scc1 L_nopf%s" % t)
    stream('1'+t,False)
    e("L_nopf%s:" % t)
def phase(par):
    t=str(par)
    e("L_phase%s:" % t)
    ts("s16, 48")
    if not EARLY: pre(t)
    for X in GR:
        sn=sN[X]; L=X+t; W=CUR[X][0]; acc=ACC[X]
        e("  s_mov_b32 s%d, 0" % sBk)
        e("L_blk%s:" % L)
        e("  s_cmp_ge_u32 s%d, 4" % sn); e("  s_cbranch_scc1 L_v4%s" % L)
        e("  s_cmp_eq_u32 s%d, 3" % sn); e("  s_cbranch_scc1 L_v3%s" % L)
        e("  s_cmp_eq_u32 s%d, 2" % sn); e("  s_cbranch_scc1 L_v2%s" % L)
        e("  s_cmp_eq_u32 s%d, 0" % sn); e("  s_cbranch_scc1 L_done%s" % L)
        block(W,acc,1); e("  s_branch L_done%s" % L)
        e("L_v2%s:" % L); block(W,acc,2); e("  s_branch L_done%s" % L)
        e("L_v3%s:" % L); block(W,acc,3); e("  s_branch L_done%s" % L)
        e("L_slow%s:" % L)
        e("  s_mul_i32 s%d, s%d, %d" % (sT,sBk,BLKS))
        e("  s_add_u32 s%d, s%d, s31" % (sT,sT))
        e("  s_add_u32 s%d, s%d, %d" % (sT,sT,(GOFF[X]-768)&0xffffffff))
        ld(W,sT)
        e("  s_waitcnt vmcnt(0)")
        e("  s_branch L_blk%s" % L)
        e("L_v4%s:" % L); block(W,acc,4)
        e("  s_sub_u32 s%d, s%d, 4" % (sn,sn))
        e("  s_cmp_eq_u32 s%d, 0" % sn); e("  s_cbranch_scc1 L_done%s" % L)
        e("  s_add_u32 s%d, s%d, 1" % (sBk,sBk))
        e("  s_cmp_lg_u32 s%d, 1" % sBk); e("  s_cbranch_scc1 L_slow%s" % L)
        for i in range(3): e("  v_mov_b32 v%d, v%d" % (W+i,CUR[X][1]+i))
        e("  s_branch L_blk%s" % L)
        e("L_done%s:" % L)
    ts("s16, 15")
    if par==0:
        e("  s_cmp_ge_u32 s%d, %d" % (sP,NS))
        e("  s_cbranch_scc1 L_epi")
    e("  v_xor_b32 v%d, 0x%x, v%d" % (vLB,TILE,vLB))
    e("  s_waitcnt vmcnt(%d)" % 0)
    if EARLY: pre(t+'e')
    ts("s16, 31")
    if not NOBAR: e("  s_barrier")
ORD=os.environ.get("ORD","cab"); DP=os.environ.get("DP","321")
SET=[(NXT,sNN),(CUR,sN)]; SK=int(os.environ.get("SK","0")); LF=int(os.environ.get("LF","0")); V3=int(os.environ.get("V3","0"))
def fetch(X,par,d,tag):
    R,C=SET[par]; k=GR.index(X)
    if X=='c': e("  s_cmp_ge_u32 s%d, 8" % sW); e("  s_cbranch_scc1 L_nf%s" % tag)
    if SK and d==2: e("  s_cmp_ge_u32 s%d, %d" % (sP,NS-2)); e("  s_cbranch_scc1 L_nf%s" % tag)
    e("  s_add_u32 s%d, s%d, %d" % (sT2,sP,16*k+d))
    e("  s_add_u32 s%d, s%d, %d" % (sT,sSO,GOFF[X]+768*d))
    e("  v_readlane_b32 s%d, v%d, s%d" % (C[X],vCNT,sT2))
    if NOSTR and d==2: e("L_nf%s:" % tag); return
    ld(R[X][0],sT)
    e("  s_cmp_le_u32 s%d, %d" % (C[X],FB)); e("  s_cbranch_scc1 L_nf%s" % tag)
    e("  s_add_u32 s%d, s%d, %d" % (sT,sT,BLKS))
    ld(R[X][1],sT)
    e("L_nf%s:" % tag)
def phase2(par):
    t=str(par); R,C=SET[par]
    e("L_phase%s:" % t)
    ts("s16, 49")
    for n,X in enumerate(ORD):
        sn=C[X]; L=X+t; W=R[X][0]; acc=ACC[X]
        if DP: e("  s_setprio %s" % DP[n])
        DY=os.environ.get("DY",""); DM=os.environ.get("DM","")
        if DY and n and DY[n-1]!=DP[n]:
            e("  s_cmp_ge_u32 s%d, 8" % sW); e("  s_cbranch_scc0 L_py%s" % L); e("  s_setprio %s" % DY[n-1]); e("L_py%s:" % L)
        if DM and DM[n]!=DP[n]:
            e("  s_cmp_ge_u32 s%d, 4" % sW); e("  s_cbranch_scc0 L_pm%s" % L); e("  s_setprio %s" % DM[n]); e("L_pm%s:" % L)
        e("  s_mov_b32 s%d, 0" % sBk)
        e("L_blk%s:" % L)
        e("  s_cmp_ge_u32 s%d, %d" % (sn,FB)); e("  s_cbranch_scc1 L_v4%s" % L)
        for v in range(FB-1,1,-1): e("  s_cmp_eq_u32 s%d, %d" % (sn,v)); e("  s_cbranch_scc1 L_w%d%s" % (v,L))
        e("  s_cmp_eq_u32 s%d, 0" % sn); e("  s_cbranch_scc1 L_done%s" % L)
        for v in range(1,FB):
            e("L_w%d%s:" % (v,L))
            if HS: block(W,acc,v>>1,v&1)
            else: block(W,acc,v)
            e("  s_branch L_done%s" % L)
        e("L_slow%s:" % L)
        e("  s_mul_i32 s%d, s%d, %d" % (sT,sBk,BLKS))
        e("  s_add_u32 s%d, s%d, s%d" % (sT,sT,sSO))
        e("  s_add_u32 s%d, s%d, %d" % (sT,sT,GOFF[X]))
        ld(W,sT)
        e("  s_waitcnt vmcnt(0)")
        e("  s_branch L_blk%s" % L)
        e("L_more%s:" % L)
        e("  s_add_u32 s%d, s%d, 1" % (sBk,sBk))
        e("  s_cmp_lg_u32 s%d, 1" % sBk); e("  s_cbranch_scc1 L_slow%s" % L)
        for i in range(3): e("  v_mov_b32 v%d, v%d" % (W+i,R[X][1]+i))
        e("  s_branch L_blk%s" % L)
        e("L_v4%s:" % L); block(W,acc,4)
        e("  s_sub_u32 s%d, s%d, %d" % (sn,sn,FB))
        e("  s_cmp_lg_u32 s%d, 0" % sn); e("  s_cbranch_scc1 L_more%s" % L)
        e("L_done%s:" % L)
        if LF and n==0: fetch('b',1-par,1,L+'x')
        if not (LF and n==2): fetch(X,par,2,L)
    ts("s16, 16")
    if par==0:
        e("  s_cmp_ge_u32 s%d, %d" % (sP,NS-1))
        e("  s_cbranch_scc1 L_epi")
    e("  s_add_u32 s%d, s%d, 1" % (sP,sP))
    e("  s_add_u32 s%d, s%d, 768" % (sSO,sSO))
    e("  v_xor_b32 v%d, 0x%x, v%d" % (vLB,TILE,vLB))
    if LF: e("  s_waitcnt vmcnt(1)")
    elif V3:
        e("  s_cmp_ge_u32 s%d, 8" % sW); e("  s_cbranch_scc0 L_w3%s" % t); e("  s_waitcnt vmcnt(2)"); e("L_w3%s:" % t); e("  s_waitcnt vmcnt(3)")
    else:
        if SK and par==1:
            e("  s_cmp_lg_u32 s%d, %d" % (sP,NS-1)); e("  s_cbranch_scc1 L_sk"); e("  s_waitcnt vmcnt(0)"); e("L_sk:")
        e("  s_waitcnt vmcnt(2)")
    if not NOBAR: e("  s_barrier")
if EARLY==2:
    e("  s_sub_u32 s%d, s%d, 768" % (sSO,sSO))
    e("  s_mov_b32 s%d, 0" % sN['c'])
    for X in GR: fetch(X,1,1,'p'+X)
    e("  s_barrier")
    phase2(0); phase2(1)
else:
    if EARLY: pre('s'); e("  s_barrier")
    phase(0); phase(1)
e("  s_branch L_phase0")
e("L_epi:")
e("  v_and_b32 v%d, 15, v%d" % (vT,vL))
e("  v_lshlrev_b32 v%d, 9, v%d" % (vT,vT))
e("  v_lshrrev_b32 v%d, 4, v%d" % (vM0,vL))
e("  v_lshl_add_u32 v%d, v%d, 3, v%d" % (vT,vM0,vT))
e("  s_lshl_b32 s%d, s%d, 13" % (sT,sRG))
e("  s_lshl_b32 s3, s%d, 6" % sCS)
e("  s_add_u32 s%d, s%d, s3" % (sT,sT))
e("  s_nop 7")
for X in GR:
    so=sT
    if X!='a': e("  s_add_u32 s%d, s%d, %d" % (sT,sT,12*8192))
    if X=='c': e("  s_cmp_ge_u32 s%d, 8" % sW); e("  s_cbranch_scc1 L_fin")
    for h in range(2):
        a=ACC[X]+4*h
        e("  v_cvt_pk_bf16_f32 v%d, v%d, v%d" % (a,a,a+1))
        e("  v_cvt_pk_bf16_f32 v%d, v%d, v%d" % (a+1,a+2,a+3))
        e("  buffer_store_dwordx2 v[%d:%d], v%d, s[8:11], s%d offen offset:%d %s" % (a,a+1,vT,so,32*h,SO))
e("L_fin:")
if DIAG:
    e("  s_waitcnt vmcnt(0)")
    ts(3)
    e("  s_lshl_b32 s3, s2, 12"); e("  s_add_u32 s3, s3, %d" % (250<<20))
    e("  v_lshlrev_b32 v0, 2, v0")
    e("  buffer_store_dword v%d, v0, s[4:7], s3 offen" % vTS)
e("L_end:")
e("  s_endpgm")
if PRE: gen_pre.emit(e,BD)
e('.section .rodata,"a"')
def desc(k,nv):
    e('.p2align 6')
    e('.amdhsa_kernel %s' % k)
    e('  .amdhsa_next_free_vgpr %d' % nv)
    e('  .amdhsa_next_free_sgpr 80')
    e('  .amdhsa_accum_offset %d' % nv)
    e('  .amdhsa_group_segment_fixed_size 0')
    e('  .amdhsa_kernarg_size 48')
    e('  .amdhsa_user_sgpr_count 2')
    e('  .amdhsa_user_sgpr_kernarg_segment_ptr 1')
    e('  .amdhsa_system_sgpr_workgroup_id_x 1')
    e('.end_amdhsa_kernel')
desc(NAME+'_kernel',NV)
if PRE: desc('pre_kernel',gen_pre.NV)
out = sys.argv[1] if len(sys.argv) > 1 else 'cdna_kernels/%s.s' % NAME
open(out,'w').write('\n'.join(o)+'\n')
```
